```python
import torch

def _softmax(x, axis=-1):
    return torch.softmax(x, dim=axis)
def _gelu(x):
    return torch.nn.functional.gelu(x, approximate="tanh")
def _silu(x):
    return torch.nn.functional.silu(x)
def _sigmoid(x):
    return torch.sigmoid(x)
def _layernorm(x, axis=-1, eps=1e-5):
    m = x.mean(dim=axis, keepdim=True)
    v = x.var(dim=axis, keepdim=True, unbiased=False)
    return (x - m) / torch.sqrt(v + eps)
def _scatter_add(tgt, idx, src, axis=0):
    return tgt.clone().index_add_(axis, idx, src)
def _segment_sum(src, seg, n):
    out = torch.zeros((n,) + src.shape[1:], dtype=src.dtype)
    return out.index_add_(0, seg, src)
def _pad(x, pw):
    flat = tuple(v for pair in reversed(pw) for v in pair)
    return torch.nn.functional.pad(x, flat)

kernel_name = 'standalone__paged_block_table_kv_pagedattention__sampling'

def setup_inputs():

    _w = (lambda a: (lambda t: t.to(torch.bfloat16) if t.is_floating_point() else t)(torch.as_tensor(a)))
    B, Hq, Hkv, Sq, Skv, D = 16, 32, 4, 8, 4096, 128
    bs = 16
    nbps = max(1, Skv // bs)
    num_phys = B * nbps + 4
    bt = torch.randperm(num_phys)[: B * nbps].reshape(B, nbps).to(torch.int64)
    cl = (nbps * bs - (torch.arange(1, B + 1, dtype=torch.int64) * 2654435761) % max(1, nbps * bs // 2)).to(torch.int64)
    return {
        "q": _w((lambda *s: torch.randn(*s, dtype=torch.bfloat16) * 0.8)(B, Hq, Sq, D)),
        "k_cache": _w((lambda *s: torch.randn(*s, dtype=torch.bfloat16) * 0.8)(num_phys, bs, Hkv, D)),
        "v_cache": _w((lambda *s: torch.randn(*s, dtype=torch.bfloat16) * 0.05)(num_phys, bs, Hkv, D)),
        "block_table": _w(bt),
        "context_lens": _w(cl),
    }

def reference(q, k_cache, v_cache, block_table, context_lens):
    B, Hq, Sq, D = q.shape
    bs = k_cache.shape[1]
    Hkv = k_cache.shape[2]
    nbps = block_table.shape[1]
    Skv = nbps * bs
    bt = block_table.reshape(-1)
    k = (lambda x, *d: x.permute(*d))(k_cache[bt].reshape(B, Skv, Hkv, D), 0, 2, 1, 3)
    v = (lambda x, *d: x.permute(*d))(v_cache[bt].reshape(B, Skv, Hkv, D), 0, 2, 1, 3)
    g = Hq // Hkv
    qg = q.reshape(B, Hkv, g, Sq, D)
    scores = torch.einsum("bhgqd,bhkd->bhgqk", qg, k) * (D ** -0.5)
    pos = torch.arange(Skv)
    msk = pos[None, :] < context_lens[:, None]
    scores = torch.where(msk[:, None, None, None, :], scores, -1e9)
    p = _softmax(scores, axis=-1)
    out = torch.einsum("bhgqk,bhkd->bhgqd", p, v)
    return out.reshape(B, Hq, Sq, D)
```

```python
import sys

NS = 4
GRID1 = 512
WTARGET = 448
MAGIC448 = 9586981
KV_BYTES = 4100 * 16 * 4 * 128 * 2
WS_BYTES = 268697600
ML_BASE = 16 * 1024 * 1024
SCALE_HEX = 0x3E0293EE

out = []
def E(s=""):
    out.append("    " + s if s and not s.endswith(":") else s)

HEADER = """; Kernarg layout for this problem (64 bytes, ptrs only, base s[0:1]):
"""

KN = "standalone__paged_block_table_kv_pagedattention__sampling"

def partition(vcl, vL, vn, vk, vPex, vx, vt0, vrc, sT, sc, stotal, stmp):
    E("v_mov_b32 %s, 0x1000" % vL)
    E("v_min_i32 %s, %s, %s" % (vt0, vcl, vL))
    E("v_cmp_lt_i32 vcc, 0, %s" % vcl)
    E("s_nop 1")
    E("v_cndmask_b32 %s, %s, %s, vcc" % (vL, vL, vt0))
    E("v_add_u32 %s, 31, %s" % (vn, vL))
    E("v_lshrrev_b32 %s, 5, %s" % (vn, vn))
    E("v_mov_b32 %s, %s" % (vx, vn))
    for sh in (1, 2, 4, 8):
        E("s_nop 1")
        E("v_add_u32_dpp %s, %s, %s row_shr:%d row_mask:0xf bank_mask:0xf bound_ctrl:0" % (vx, vx, vx, sh))
    E("s_nop 1")
    E("v_readlane_b32 %s, %s, 15" % (sT, vx))
    E("s_nop 3")
    E("s_lshl_b32 %s, %s, 2" % (sT, sT))
    E("s_add_u32 %s, %s, %d" % (stmp, sT, WTARGET - 1))
    E("s_mov_b32 %s, %d" % (sc, MAGIC448))
    E("s_mul_hi_u32 %s, %s, %s" % (sc, stmp, sc))
    E("v_cvt_f32_u32 %s, %s" % (vrc, sc))
    E("v_rcp_f32 %s, %s" % (vrc, vrc))
    E("v_add_u32 %s, %s, %s" % (vt0, sc, vn))
    E("v_cvt_f32_u32 %s, %s" % (vt0, vt0))
    E("v_add_f32 %s, -0.5, %s" % (vt0, vt0))
    E("v_mul_f32 %s, %s, %s" % (vt0, vt0, vrc))
    E("v_cvt_u32_f32 %s, %s" % (vk, vt0))
    E("v_lshlrev_b32 %s, 2, %s" % (vx, vk))
    for sh in (1, 2, 4, 8):
        E("s_nop 1")
        E("v_add_u32_dpp %s, %s, %s row_shr:%d row_mask:0xf bank_mask:0xf bound_ctrl:0" % (vx, vx, vx, sh))
    E("v_lshlrev_b32 %s, 2, %s" % (vt0, vk))
    E("v_sub_u32 %s, %s, %s" % (vPex, vx, vt0))
    E("s_nop 0")
    E("v_readlane_b32 %s, %s, 15" % (stotal, vx))
    E("s_nop 3")

def srd(base, plo, phi, nbytes):
    E("s_mov_b32 s%d, %s" % (base, plo))
    E("s_and_b32 s%d, %s, 0xffff" % (base + 1, phi))
    E("s_mov_b32 s%d, %d" % (base + 2, nbytes))
    E("s_mov_b32 s%d, 0x20000" % (base + 3))

def kernel1():
    vQ = 8
    vO = 24
    vK = 56
    vV = 88
    vS = 120
    vP = 128
    vKA = 132
    vVA = 136
    vVO = 144
    vTAB = 148
    vKIDX = 149
    vM = 150
    vMC = 151
    vL_ = 152
    vT0 = 153
    vT1 = 154
    vAL = 155
    vMCN = 156
    vLANE = 157
    vOOFF = 158
    vT2 = 159
    NV = 160
    pcl, pL, pn, pk, pPex, px, pt0, prc = ["v%d" % (vK + i) for i in range(8)]
    sKV = 20
    sAUX = 24
    sQS = 28
    sWS = 32
    (sWAVE, sB, sH, sI, sSTART, sCOUNT, sNB, sL, sC, sT, sTOT, sNVL, sSCALE, sJ,
     sSTEP, sSOFF, sWBASE, sTMP, sTMP2, sCL, sP, sNV, sQB, sPG) = ["s%d" % i for i in range(36, 60)]

    E("%s_kernel:" % KN)
    E("s_load_dwordx16 s[4:19], s[0:1], 0")
    E("v_and_b32 v%d, 63, v0" % vLANE)
    E("v_lshrrev_b32 v%d, 6, v0" % vT0)
    E("v_and_b32 v%d, 15, v0" % vT1)
    E("v_readfirstlane_b32 %s, v%d" % (sWAVE, vT0))
    E("v_lshlrev_b32 v%d, 2, v%d" % (vT0, vT1))
    E("s_waitcnt lgkmcnt(0)")
    srd(sAUX, "s12", "s13", 64)
    E("buffer_load_dword %s, v%d, s[%d:%d], 0 offen" % (pcl, vT0, sAUX, sAUX + 3))
    E("s_and_b32 %s, %s, 1" % (sTMP, sWAVE))
    E("s_cmp_eq_u32 %s, 0" % sTMP)
    E("s_cselect_b32 s%d, s6, s8" % sKV)
    E("s_cselect_b32 s%d, s7, s9" % (sKV + 1))
    E("s_and_b32 s%d, s%d, 0xffff" % (sKV + 1, sKV + 1))
    E("s_mov_b32 s%d, %d" % (sKV + 2, KV_BYTES))
    E("s_mov_b32 s%d, 0x20000" % (sKV + 3))
    srd(sQS, "s4", "s5", 16 * 32 * 8 * 128 * 2)
    srd(sWS, "s18", "s19", WS_BYTES)
    E("s_lshr_b32 %s, %s, 1" % (sPG, sWAVE))
    E("s_lshl_b32 %s, %s, 13" % (sWBASE, sTMP))
    E("s_lshl_b32 %s, %s, 12" % (sTMP2, sPG))
    E("s_add_u32 %s, %s, %s" % (sWBASE, sWBASE, sTMP2))
    E("v_lshrrev_b32 v%d, 4, v%d" % (vT0, vLANE))
    for s in range(4):
        E("v_add_u32 v%d, %d, v%d" % (vT2, 4 * s, vT0))
        E("v_xor_b32 v%d, v%d, v%d" % (vT2, vT2, vT1))
        E("v_lshlrev_b32 v%d, 4, v%d" % (vT2, vT2))
        E("v_lshl_add_u32 v%d, v%d, 8, v%d" % (vKA + s, vT1, vT2))
    E("v_lshrrev_b32 v%d, 2, v%d" % (vAL, vT1))
    E("v_lshl_add_u32 v%d, v%d, 2, v%d" % (vAL, vT0, vAL))
    E("v_and_b32 v%d, 7, v%d" % (vMCN, vAL))
    E("v_and_b32 v%d, 3, v%d" % (vM, vT1))
    E("v_lshlrev_b32 v%d, 3, v%d" % (vM, vM))
    E("v_lshl_add_u32 v%d, v%d, 8, v%d" % (vM, vAL, vM))
    for dt in range(8):
        E("v_xor_b32 v%d, %d, v%d" % (vT2, dt, vMCN))
        E("v_lshl_add_u32 v%d, v%d, 5, v%d" % (vVA + dt, vT2, vM))
    E("v_lshlrev_b32 v%d, 2, v%d" % (vKIDX, vT0))
    E("s_cmp_eq_u32 %s, 0" % sTMP)
    E("s_cselect_b32 %s, 0, 1" % sTMP2)
    for q in range(4):
        E("v_add_u32 v%d, %d, v%d" % (vT2, 4 * q, vT0))
        E("v_and_b32 v%d, 7, v%d" % (vAL, vT2))
        E("v_lshlrev_b32 v%d, 1, v%d" % (vAL, vAL))
        E("v_cmp_eq_u32_e64 vcc, 0, %s" % sTMP2)
        E("s_nop 1")
        E("v_cndmask_b32 v%d, v%d, v%d, vcc" % (vAL, vAL, vT2))
        E("v_xor_b32 v%d, v%d, v%d" % (vAL, vAL, vT1))
        E("v_lshlrev_b32 v%d, 4, v%d" % (vAL, vAL))
        E("v_lshl_add_u32 v%d, v%d, 10, v%d" % (vAL, vT2, vAL))
        E("v_subrev_u32 v%d, %d, v%d" % (vVO + q, 1024 * q, vAL))
    E("v_lshlrev_b32 v%d, 4, v%d" % (vAL, vT0))
    E("v_lshl_add_u32 v%d, v%d, 8, v%d" % (vOOFF, vT1, vAL))
    E("s_waitcnt vmcnt(0)")
    partition(pcl, pL, pn, pk, pPex, px, pt0, prc, sT, sC, sTOT, sTMP)
    E("s_cmp_ge_u32 s2, %s" % sTOT)
    E("s_cbranch_scc1 K1_EXIT")
    E("v_cmp_ge_u32 vcc, s2, %s" % pPex)
    E("s_nop 3")
    E("s_and_b32 %s, vcc_lo, 0xffff" % sTMP)
    E("s_bcnt1_i32_b32 %s, %s" % (sTMP, sTMP))
    E("s_sub_u32 %s, %s, 1" % (sB, sTMP))
    E("s_nop 3")
    E("v_readlane_b32 %s, %s, %s" % (sNB, pn, sB))
    E("v_readlane_b32 %s, %s, %s" % (sL, pL, sB))
    E("v_readlane_b32 %s, %s, %s" % (sP, pPex, sB))
    E("v_readlane_b32 %s, %s, %s" % (sCL, pcl, sB))
    E("s_nop 3")
    E("s_sub_u32 %s, s2, %s" % (sTMP, sP))
    E("s_and_b32 %s, %s, 3" % (sH, sTMP))
    E("s_lshr_b32 %s, %s, 2" % (sI, sTMP))
    E("s_mul_i32 %s, %s, %s" % (sSTART, sI, sC))
    E("s_sub_u32 %s, %s, %s" % (sCOUNT, sNB, sSTART))
    E("s_min_u32 %s, %s, %s" % (sCOUNT, sCOUNT, sC))
    E("s_sub_u32 %s, %s, 1" % (sTMP2, sNB))
    E("s_lshl_b32 %s, %s, 5" % (sTMP2, sTMP2))
    E("s_sub_u32 %s, %s, %s" % (sTMP2, sL, sTMP2))
    E("s_add_u32 %s, %s, %s" % (sTMP, sSTART, sCOUNT))
    E("s_cmp_eq_u32 %s, %s" % (sTMP, sNB))
    E("s_cselect_b32 %s, %s, 32" % (sNVL, sTMP2))
    E("s_mov_b32 %s, 0x%x" % (sSCALE, SCALE_HEX))
    E("s_cmp_gt_i32 %s, 0" % sCL)
    E("s_cselect_b32 %s, %s, 0" % (sSCALE, sSCALE))
    srd(sAUX, "s10", "s11", 16 * 256 * 4)
    E("v_add_u32 v%d, %s, v%d" % (vT0, sSTART, vLANE))
    E("v_lshlrev_b32 v%d, 1, v%d" % (vT0, vT0))
    E("v_add_u32 v%d, %s, v%d" % (vT0, sPG, vT0))
    E("s_lshl_b32 %s, %s, 8" % (sTMP, sB))
    E("v_add_u32 v%d, %s, v%d" % (vT1, sTMP, vT0))
    E("v_lshlrev_b32 v%d, 2, v%d" % (vT1, vT1))
    E("buffer_load_dword v%d, v%d, s[%d:%d], 0 offen" % (vTAB, vT1, sAUX, sAUX + 3))
    E("s_lshl_b32 %s, %s, 2" % (sTMP, sB))
    E("s_add_u32 %s, %s, %s" % (sTMP, sTMP, sH))
    E("s_lshl_b32 %s, %s, 6" % (sTMP, sTMP))
    E("s_lshl_b32 %s, %s, 4" % (sTMP2, sWAVE))
    E("s_add_u32 %s, %s, %s" % (sTMP, sTMP, sTMP2))
    E("s_lshl_b32 %s, %s, 8" % (sQB, sTMP))
    for s in range(4):
        E("buffer_load_dwordx4 v[%d:%d], v%d, s[%d:%d], %s offen offset:%d" %
          (vQ + 4 * s, vQ + 4 * s + 3, vOOFF, sQS, sQS + 3, sQB, 64 * s))
    E("v_lshlrev_b32 v%d, 4, v%d" % (vT0, vT0))
    E("v_cmp_gt_u32 vcc, %s, v%d" % (sL, vT0))
    E("v_cmp_gt_u32 s[60:61], %s, v%d" % (sCOUNT, vLANE))
    E("s_nop 1")
    E("s_and_b64 vcc, vcc, s[60:61]")
    E("s_lshl_b32 %s, %s, 8" % (sTMP, sH))
    E("v_mov_b32 v%d, %d" % (vT1, KV_BYTES))
    E("s_waitcnt vmcnt(4)")
    E("v_lshlrev_b32 v%d, 14, v%d" % (vTAB, vTAB))
    E("v_add_u32 v%d, %s, v%d" % (vTAB, sTMP, vTAB))
    E("v_cndmask_b32 v%d, v%d, v%d, vcc" % (vTAB, vT1, vTAB))
    for i in range(32):
        E("v_mov_b32 v%d, 0" % (vO + i))
    E("v_mov_b32 v%d, 0xff800000" % vM)
    E("v_mov_b32 v%d, 0xff800000" % vMC)
    E("v_mov_b32 v%d, 0" % vL_)
    E("s_mov_b32 %s, 0" % sJ)
    E("s_mov_b32 %s, 0" % sSTEP)

    def dma_issue(slot):
        E("v_readlane_b32 %s, v%d, %s" % (sSOFF, vTAB, sJ))
        E("s_add_u32 m0, %s, %d" % (sWBASE, slot * 16384))
        E("s_add_u32 %s, %s, 1" % (sJ, sJ))
        E("s_nop 2")
        for q in range(4):
            E("buffer_load_dwordx4 v%d, s[%d:%d], %s offen offset:%d lds" %
              (vVO + q, sKV, sKV + 3, sSOFF, 1024 * q))

    for st in range(NS - 1):
        dma_issue(st)

    def step(slot):
        base = slot * 16384
        E("s_waitcnt vmcnt(%d)" % (4 * (NS - 2)))
        E("s_barrier")
        dma_issue((slot + NS - 1) % NS)
        for t in range(2):
            for s in range(4):
                r = vK + (t * 4 + s) * 4
                E("ds_read_b128 v[%d:%d], v%d offset:%d" % (r, r + 3, vKA + s, base + t * 4096))
        E("s_add_u32 %s, %s, 1" % (sSTEP, sSTEP))
        E("s_cmp_eq_u32 %s, %s" % (sSTEP, sCOUNT))
        E("s_cselect_b32 %s, %s, 32" % (sNV, sNVL))
        E("s_waitcnt lgkmcnt(0)")
        for s in range(4):
            for t in range(2):
                r = vK + (t * 4 + s) * 4
                c = "0" if s == 0 else "v[%d:%d]" % (vS + 4 * t, vS + 4 * t + 3)
                E("v_mfma_f32_16x16x32_bf16 v[%d:%d], v[%d:%d], v[%d:%d], %s" %
                  (vS + 4 * t, vS + 4 * t + 3, r, r + 3, vQ + 4 * s, vQ + 4 * s + 3, c))
        for dt in range(8):
            r = vV + dt * 4
            E("ds_read_b64_tr_b16 v[%d:%d], v%d offset:%d" % (r, r + 1, vVA + dt, base + 8192))
            E("ds_read_b64_tr_b16 v[%d:%d], v%d offset:%d" % (r + 2, r + 3, vVA + dt, base + 8192 + 4096))
        E("s_cmp_lt_u32 %s, 32" % sNV)
        E("s_nop 7")
        E("s_cbranch_scc0 K1_NOMASK_%d" % slot)
        for t in range(2):
            for i in range(4):
                E("s_sub_u32 %s, %s, %d" % (sTMP, sNV, 16 * t + i))
                E("v_mov_b32 v%d, 0xff800000" % vT0)
                E("v_cmp_gt_i32 vcc, %s, v%d" % (sTMP, vKIDX))
                E("s_nop 1")
                E("v_cndmask_b32 v%d, v%d, v%d, vcc" % (vS + 4 * t + i, vT0, vS + 4 * t + i))
        E("K1_NOMASK_%d:" % slot)
        E("v_max3_f32 v%d, v%d, v%d, v%d" % (vT0, vS, vS + 1, vS + 2))
        E("v_max3_f32 v%d, v%d, v%d, v%d" % (vT1, vS + 3, vS + 4, vS + 5))
        E("v_max3_f32 v%d, v%d, v%d, v%d" % (vT0, vT0, vS + 6, vS + 7))
        E("v_max3_f32 v%d, v%d, v%d, v%d" % (vT0, vT0, vT1, vM))
        E("v_mov_b32 v%d, v%d" % (vT1, vT0))
        E("s_nop 1")
        E("v_permlane16_swap_b32 v%d, v%d" % (vT0, vT1))
        E("v_max_f32 v%d, v%d, v%d" % (vT0, vT0, vT1))
        E("v_mov_b32 v%d, v%d" % (vT1, vT0))
        E("s_nop 1")
        E("v_permlane32_swap_b32 v%d, v%d" % (vT0, vT1))
        E("v_max_f32 v%d, v%d, v%d" % (vM, vT0, vT1))
        E("v_mul_f32 v%d, %s, v%d" % (vMCN, sSCALE, vM))
        E("v_sub_f32 v%d, v%d, v%d" % (vT0, vMC, vMCN))
        E("v_exp_f32 v%d, v%d" % (vAL, vT0))
        E("v_mov_b32 v%d, v%d" % (vMC, vMCN))
        for i in range(8):
            E("v_fma_f32 v%d, v%d, %s, -v%d" % (vS + i, vS + i, sSCALE, vMCN))
        for i in range(8):
            E("v_exp_f32 v%d, v%d" % (vS + i, vS + i))
        E("v_mul_f32 v%d, v%d, v%d" % (vL_, vL_, vAL))
        E("v_add_f32 v%d, v%d, v%d" % (vT0, vS, vS + 1))
        E("v_add_f32 v%d, v%d, v%d" % (vT1, vS + 2, vS + 3))
        E("v_add_f32 v%d, v%d, v%d" % (vT2, vS + 4, vS + 5))
        E("v_add_f32 v%d, v%d, v%d" % (vT0, vT0, vT1))
        E("v_add_f32 v%d, v%d, v%d" % (vT1, vS + 6, vS + 7))
        E("v_add_f32 v%d, v%d, v%d" % (vT2, vT2, vT1))
        E("v_add_f32 v%d, v%d, v%d" % (vT0, vT0, vT2))
        E("v_add_f32 v%d, v%d, v%d" % (vL_, vL_, vT0))
        for i in range(4):
            E("v_cvt_pk_bf16_f32 v%d, v%d, v%d" % (vP + i, vS + 2 * i, vS + 2 * i + 1))
        for i in range(32):
            E("v_mul_f32 v%d, v%d, v%d" % (vO + i, vO + i, vAL))
        E("s_waitcnt lgkmcnt(0)")
        for dt in range(8):
            E("v_mfma_f32_16x16x32_bf16 v[%d:%d], v[%d:%d], v[%d:%d], v[%d:%d]" %
              (vO + 4 * dt, vO + 4 * dt + 3, vV + 4 * dt, vV + 4 * dt + 3, vP, vP + 3,
               vO + 4 * dt, vO + 4 * dt + 3))
        E("s_cmp_ge_u32 %s, %s" % (sSTEP, sCOUNT))
        E("s_cbranch_scc1 K1_DONE")

    E("K1_LOOP:")
    for slot in range(NS):
        step(slot)
    E("s_branch K1_LOOP")
    E("K1_DONE:")
    E("v_mov_b32 v%d, v%d" % (vT1, vL_))
    E("s_nop 1")
    E("v_permlane16_swap_b32 v%d, v%d" % (vL_, vT1))
    E("v_add_f32 v%d, v%d, v%d" % (vL_, vL_, vT1))
    E("v_mov_b32 v%d, v%d" % (vT1, vL_))
    E("s_nop 1")
    E("v_permlane32_swap_b32 v%d, v%d" % (vL_, vT1))
    E("v_add_f32 v%d, v%d, v%d" % (vL_, vL_, vT1))
    E("v_and_b32 v%d, 15, v%d" % (vT1, vLANE))
    E("v_lshrrev_b32 v%d, 4, v%d" % (vT0, vLANE))
    E("s_lshl_b32 %s, %s, 4" % (sTMP, sWAVE))
    E("v_add_u32 v%d, %s, v%d" % (vT1, sTMP, vT1))
    E("v_lshlrev_b32 v%d, 4, v%d" % (vT0, vT0))
    E("v_lshl_add_u32 v%d, v%d, 9, v%d" % (vOOFF, vT1, vT0))
    E("v_lshlrev_b32 v%d, 3, v%d" % (vT1, vT1))
    E("s_lshl_b32 %s, s2, 15" % sTMP)
    E("s_lshl_b32 %s, s2, 9" % sTMP2)
    E("s_add_u32 %s, %s, %d" % (sTMP2, sTMP2, ML_BASE))
    E("s_nop 4")
    for dt in range(8):
        E("buffer_store_dwordx4 v[%d:%d], v%d, s[%d:%d], %s offen offset:%d" %
          (vO + 4 * dt, vO + 4 * dt + 3, vOOFF, sWS, sWS + 3, sTMP, 64 * dt))
    E("v_mov_b32 v%d, v%d" % (vS, vMC))
    E("v_mov_b32 v%d, v%d" % (vS + 1, vL_))
    E("buffer_store_dwordx2 v[%d:%d], v%d, s[%d:%d], %s offen" % (vS, vS + 1, vT1, sWS, sWS + 3, sTMP2))
    E("K1_EXIT:")
    E("s_waitcnt vmcnt(0)")
    E("s_endpgm")
    return NV

def kernel2():
    vACC = 8
    vOB = 16
    vML = 80
    vM, vL_, vMN, vA, vW, vT0, vT1, vOOFF, vMLOFF, vLANE = range(96, 106)
    pcl, pL, pn, pk, pPex, px, pt0, prc = ["v%d" % i for i in range(106, 114)]
    NV = 114
    sWS = 32
    sAUX = 24
    sOUT = 28
    (sB, sH, sBH, sK, sP, sI, sT, sC, sTOT, sTMP, sTMP2) = ["s%d" % i for i in range(36, 47)]
    sSO = [48 + u for u in range(8)]
    sSM = [56 + u for u in range(8)]
    sLIM = [64 + u for u in range(8)]
    E("%s_combine_kernel:" % KN)
    E("s_load_dwordx16 s[4:19], s[0:1], 0")
    E("s_cmp_ge_u32 s2, 256")
    E("s_cbranch_scc1 K2_EXIT")
    E("v_and_b32 v%d, 63, v0" % vLANE)
    E("v_and_b32 v%d, 15, v0" % vT1)
    E("v_lshlrev_b32 v%d, 2, v%d" % (vT0, vT1))
    E("s_waitcnt lgkmcnt(0)")
    srd(sAUX, "s12", "s13", 64)
    E("buffer_load_dword %s, v%d, s[%d:%d], 0 offen" % (pcl, vT0, sAUX, sAUX + 3))
    srd(sWS, "s18", "s19", WS_BYTES)
    srd(sOUT, "s14", "s15", 16 * 32 * 8 * 128 * 2)
    E("s_lshr_b32 %s, s2, 2" % sBH)
    E("s_lshr_b32 %s, %s, 2" % (sB, sBH))
    E("s_and_b32 %s, %s, 3" % (sH, sBH))
    E("s_and_b32 %s, s2, 3" % sTMP)
    E("s_lshl_b32 %s, %s, 4" % (sTMP, sTMP))
    E("v_lshrrev_b32 v%d, 4, v0" % vT0)
    E("v_add_u32 v%d, %s, v%d" % (vT0, sTMP, vT0))
    E("v_lshlrev_b32 v%d, 5, v%d" % (vT1, vT1))
    E("v_lshl_add_u32 v%d, v%d, 9, v%d" % (vOOFF, vT0, vT1))
    E("v_lshlrev_b32 v%d, 3, v%d" % (vMLOFF, vT0))
    E("s_waitcnt vmcnt(0)")
    partition(pcl, pL, pn, pk, pPex, px, pt0, prc, sT, sC, sTOT, sTMP)
    E("v_readlane_b32 %s, %s, %s" % (sK, pk, sB))
    E("v_readlane_b32 %s, %s, %s" % (sP, pPex, sB))
    for j in range(8):
        E("v_mov_b32 v%d, 0" % (vACC + j))
    E("v_mov_b32 v%d, 0xff800000" % vM)
    E("v_mov_b32 v%d, 0" % vL_)
    E("s_mov_b32 %s, 0" % sI)
    E("s_mov_b32 s72, 0x7f800000")
    E("s_mov_b32 s73, 0xff800000")
    E("K2_BATCH:")
    for u in range(8):
        E("s_add_u32 %s, %s, %d" % (sTMP, sI, u))
        E("s_cmp_lt_u32 %s, %s" % (sTMP, sK))
        E("s_cselect_b32 s%d, s72, s73" % sLIM[u])
        E("s_sub_u32 %s, %s, 1" % (sTMP2, sK))
        E("s_min_u32 %s, %s, %s" % (sTMP, sTMP, sTMP2))
        E("s_lshl_b32 %s, %s, 2" % (sTMP, sTMP))
        E("s_add_u32 %s, %s, %s" % (sTMP, sTMP, sP))
        E("s_add_u32 %s, %s, %s" % (sTMP, sTMP, sH))
        E("s_lshl_b32 s%d, %s, 15" % (sSO[u], sTMP))
        E("s_lshl_b32 s%d, %s, 9" % (sSM[u], sTMP))
        E("s_add_u32 s%d, s%d, %d" % (sSM[u], sSM[u], ML_BASE))
        E("buffer_load_dwordx2 v[%d:%d], v%d, s[%d:%d], s%d offen" %
          (vML + 2 * u, vML + 2 * u + 1, vMLOFF, sWS, sWS + 3, sSM[u]))
        E("buffer_load_dwordx4 v[%d:%d], v%d, s[%d:%d], s%d offen" %
          (vOB + 8 * u, vOB + 8 * u + 3, vOOFF, sWS, sWS + 3, sSO[u]))
        E("buffer_load_dwordx4 v[%d:%d], v%d, s[%d:%d], s%d offen offset:16" %
          (vOB + 8 * u + 4, vOB + 8 * u + 7, vOOFF, sWS, sWS + 3, sSO[u]))
    for u in range(8):
        E("s_waitcnt vmcnt(%d)" % (3 * (7 - u)))
        E("v_min_f32 v%d, s%d, v%d" % (vT0, sLIM[u], vML + 2 * u))
        E("v_max_f32 v%d, v%d, v%d" % (vMN, vM, vT0))
        E("v_sub_f32 v%d, v%d, v%d" % (vA, vM, vMN))
        E("v_sub_f32 v%d, v%d, v%d" % (vW, vT0, vMN))
        E("v_exp_f32 v%d, v%d" % (vA, vA))
        E("v_exp_f32 v%d, v%d" % (vW, vW))
        E("v_mov_b32 v%d, v%d" % (vM, vMN))
        E("v_mul_f32 v%d, v%d, v%d" % (vL_, vL_, vA))
        E("v_fma_f32 v%d, v%d, v%d, v%d" % (vL_, vML + 2 * u + 1, vW, vL_))
        for j in range(8):
            E("v_mul_f32 v%d, v%d, v%d" % (vACC + j, vACC + j, vA))
            E("v_fma_f32 v%d, v%d, v%d, v%d" % (vACC + j, vOB + 8 * u + j, vW, vACC + j))
    E("s_add_u32 %s, %s, 8" % (sI, sI))
    E("s_cmp_lt_u32 %s, %s" % (sI, sK))
    E("s_cbranch_scc1 K2_BATCH")
    E("v_rcp_f32 v%d, v%d" % (vW, vL_))
    E("s_nop 0")
    for j in range(8):
        E("v_mul_f32 v%d, v%d, v%d" % (vACC + j, vACC + j, vW))
    for j in range(4):
        E("v_cvt_pk_bf16_f32 v%d, v%d, v%d" % (vOB + j, vACC + 2 * j, vACC + 2 * j + 1))
    E("v_lshrrev_b32 v%d, 1, v%d" % (vT0, vOOFF))
    E("s_lshl_b32 %s, %s, 14" % (sTMP, sBH))
    E("s_nop 4")
    E("buffer_store_dwordx4 v[%d:%d], v%d, s[%d:%d], %s offen" % (vOB, vOB + 3, vT0, sOUT, sOUT + 3, sTMP))
    E("K2_EXIT:")
    E("s_waitcnt vmcnt(0)")
    E("s_endpgm")
    return NV

def descriptor(name, nv, nsgpr=80):
    E('.section .rodata,"a"')
    E(".p2align 6")
    E(".amdhsa_kernel %s" % name)
    E("  .amdhsa_next_free_vgpr %d" % nv)
    E("  .amdhsa_next_free_sgpr %d" % nsgpr)
    E("  .amdhsa_accum_offset %d" % ((nv + 3) // 4 * 4))
    E("  .amdhsa_group_segment_fixed_size 0")
    E("  .amdhsa_kernarg_size 64")
    E("  .amdhsa_user_sgpr_count 2")
    E("  .amdhsa_user_sgpr_kernarg_segment_ptr 1")
    E("  .amdhsa_system_sgpr_workgroup_id_x 1")
    E(".end_amdhsa_kernel")

out.append(HEADER.rstrip("\n"))
out.append("; @launch kernel=%s_kernel grid=(%d,1,1) block=(256,1,1) lds=%d" % (KN, GRID1, NS * 16384))
out.append("; @launch kernel=%s_combine_kernel grid=(256,1,1) block=(256,1,1) lds=0" % KN)
out.append('.amdgcn_target "amdgcn-amd-amdhsa--gfx950"')
out.append(".text")
out.append(".globl %s_kernel" % KN)
out.append(".p2align 8")
out.append(".type %s_kernel,@function" % KN)
nv1 = kernel1()
out.append(".globl %s_combine_kernel" % KN)
out.append(".p2align 8")
out.append(".type %s_combine_kernel,@function" % KN)
nv2 = kernel2()
descriptor("%s_kernel" % KN, nv1)
descriptor("%s_combine_kernel" % KN, nv2)
open(sys.argv[1], "w").write("\n".join(out) + "\n")
```

```python
import sys, os
STAMP = os.environ.get("STAMP") is not None

NS = 4
GRID1 = 512
WTARGET = 448
MAGIC448 = 9586981
KV_BYTES = 4100 * 16 * 4 * 128 * 2
WS_BYTES = 268697600
ML_BASE = 16 * 1024 * 1024
SCALE_HEX = 0x3E0293EE

out = []
def stamp(i):
    if STAMP:
        E("s_memrealtime s[62:63]")
        E("s_waitcnt lgkmcnt(0)")
        E("s_mov_b32 s%d, s62" % (64 + i))
def E(s=""):
    out.append("    " + s if s and not s.endswith(":") else s)

HEADER = """; Kernarg layout for this problem (64 bytes, ptrs only, base s[0:1]):
"""

KN = "standalone__paged_block_table_kv_pagedattention__sampling"

def partition(vcl, vL, vn, vk, vPex, vx, vt0, vrc, sT, sc, stotal, stmp):
    E("v_mov_b32 %s, 0x1000" % vL)
    E("v_min_i32 %s, %s, %s" % (vt0, vcl, vL))
    E("v_cmp_lt_i32 vcc, 0, %s" % vcl)
    E("s_nop 1")
    E("v_cndmask_b32 %s, %s, %s, vcc" % (vL, vL, vt0))
    E("v_add_u32 %s, 31, %s" % (vn, vL))
    E("v_lshrrev_b32 %s, 5, %s" % (vn, vn))
    E("v_mov_b32 %s, %s" % (vx, vn))
    for sh in (1, 2, 4, 8):
        E("s_nop 1")
        E("v_add_u32_dpp %s, %s, %s row_shr:%d row_mask:0xf bank_mask:0xf bound_ctrl:0" % (vx, vx, vx, sh))
    E("s_nop 1")
    E("v_readlane_b32 %s, %s, 15" % (sT, vx))
    E("s_nop 3")
    E("s_lshl_b32 %s, %s, 2" % (sT, sT))
    E("s_add_u32 %s, %s, %d" % (stmp, sT, WTARGET - 1))
    E("s_mov_b32 %s, %d" % (sc, MAGIC448))
    E("s_mul_hi_u32 %s, %s, %s" % (sc, stmp, sc))
    E("v_cvt_f32_u32 %s, %s" % (vrc, sc))
    E("v_rcp_f32 %s, %s" % (vrc, vrc))
    E("v_add_u32 %s, %s, %s" % (vt0, sc, vn))
    E("v_cvt_f32_u32 %s, %s" % (vt0, vt0))
    E("v_add_f32 %s, -0.5, %s" % (vt0, vt0))
    E("v_mul_f32 %s, %s, %s" % (vt0, vt0, vrc))
    E("v_cvt_u32_f32 %s, %s" % (vk, vt0))
    E("v_lshlrev_b32 %s, 2, %s" % (vx, vk))
    for sh in (1, 2, 4, 8):
        E("s_nop 1")
        E("v_add_u32_dpp %s, %s, %s row_shr:%d row_mask:0xf bank_mask:0xf bound_ctrl:0" % (vx, vx, vx, sh))
    E("v_lshlrev_b32 %s, 2, %s" % (vt0, vk))
    E("v_sub_u32 %s, %s, %s" % (vPex, vx, vt0))
    E("s_nop 0")
    E("v_readlane_b32 %s, %s, 15" % (stotal, vx))
    E("s_nop 3")

def srd(base, plo, phi, nbytes):
    E("s_mov_b32 s%d, %s" % (base, plo))
    E("s_and_b32 s%d, %s, 0xffff" % (base + 1, phi))
    E("s_mov_b32 s%d, %d" % (base + 2, nbytes))
    E("s_mov_b32 s%d, 0x20000" % (base + 3))

def kernel1():
    vQ = 8
    vO = 24
    vK = 56
    vV = 88
    vS = 120
    vP = 128
    vKA = 132
    vVA = 136
    vVO = 144
    vTAB = 148
    vKIDX = 149
    vM = 150
    vMC = 151
    vL_ = 152
    vT0 = 153
    vT1 = 154
    vAL = 155
    vMCN = 156
    vLANE = 157
    vOOFF = 158
    vT2 = 159
    NV = 160
    pcl, pL, pn, pk, pPex, px, pt0, prc = ["v%d" % (vK + i) for i in range(8)]
    sKV = 20
    sAUX = 24
    sQS = 28
    sWS = 32
    (sWAVE, sB, sH, sI, sSTART, sCOUNT, sNB, sL, sC, sT, sTOT, sNVL, sSCALE, sJ,
     sSTEP, sSOFF, sWBASE, sTMP, sTMP2, sCL, sP, sNV, sQB, sPG) = ["s%d" % i for i in range(36, 60)]

    E("%s_kernel:" % KN)
    stamp(0)
    E("s_load_dwordx16 s[4:19], s[0:1], 0")
    E("v_and_b32 v%d, 63, v0" % vLANE)
    E("v_lshrrev_b32 v%d, 6, v0" % vT0)
    E("v_and_b32 v%d, 15, v0" % vT1)
    E("v_readfirstlane_b32 %s, v%d" % (sWAVE, vT0))
    E("v_lshlrev_b32 v%d, 2, v%d" % (vT0, vT1))
    E("s_waitcnt lgkmcnt(0)")
    srd(sAUX, "s12", "s13", 64)
    E("buffer_load_dword %s, v%d, s[%d:%d], 0 offen" % (pcl, vT0, sAUX, sAUX + 3))
    E("s_and_b32 %s, %s, 1" % (sTMP, sWAVE))
    E("s_cmp_eq_u32 %s, 0" % sTMP)
    E("s_cselect_b32 s%d, s6, s8" % sKV)
    E("s_cselect_b32 s%d, s7, s9" % (sKV + 1))
    E("s_and_b32 s%d, s%d, 0xffff" % (sKV + 1, sKV + 1))
    E("s_mov_b32 s%d, %d" % (sKV + 2, KV_BYTES))
    E("s_mov_b32 s%d, 0x20000" % (sKV + 3))
    srd(sQS, "s4", "s5", 16 * 32 * 8 * 128 * 2)
    srd(sWS, "s18", "s19", WS_BYTES)
    E("s_lshr_b32 %s, %s, 1" % (sPG, sWAVE))
    E("s_lshl_b32 %s, %s, 13" % (sWBASE, sTMP))
    E("s_lshl_b32 %s, %s, 12" % (sTMP2, sPG))
    E("s_add_u32 %s, %s, %s" % (sWBASE, sWBASE, sTMP2))
    E("v_lshrrev_b32 v%d, 4, v%d" % (vT0, vLANE))
    for s in range(4):
        E("v_add_u32 v%d, %d, v%d" % (vT2, 4 * s, vT0))
        E("v_xor_b32 v%d, v%d, v%d" % (vT2, vT2, vT1))
        E("v_lshlrev_b32 v%d, 4, v%d" % (vT2, vT2))
        E("v_lshl_add_u32 v%d, v%d, 8, v%d" % (vKA + s, vT1, vT2))
    E("v_lshrrev_b32 v%d, 2, v%d" % (vAL, vT1))
    E("v_lshl_add_u32 v%d, v%d, 2, v%d" % (vAL, vT0, vAL))
    E("v_and_b32 v%d, 7, v%d" % (vMCN, vAL))
    E("v_and_b32 v%d, 3, v%d" % (vM, vT1))
    E("v_lshlrev_b32 v%d, 3, v%d" % (vM, vM))
    E("v_lshl_add_u32 v%d, v%d, 8, v%d" % (vM, vAL, vM))
    for dt in range(8):
        E("v_xor_b32 v%d, %d, v%d" % (vT2, dt, vMCN))
        E("v_lshl_add_u32 v%d, v%d, 5, v%d" % (vVA + dt, vT2, vM))
    E("v_lshlrev_b32 v%d, 2, v%d" % (vKIDX, vT0))
    E("s_cmp_eq_u32 %s, 0" % sTMP)
    E("s_cselect_b32 %s, 0, 1" % sTMP2)
    for q in range(4):
        E("v_add_u32 v%d, %d, v%d" % (vT2, 4 * q, vT0))
        E("v_and_b32 v%d, 7, v%d" % (vAL, vT2))
        E("v_lshlrev_b32 v%d, 1, v%d" % (vAL, vAL))
        E("v_cmp_eq_u32_e64 vcc, 0, %s" % sTMP2)
        E("s_nop 1")
        E("v_cndmask_b32 v%d, v%d, v%d, vcc" % (vAL, vAL, vT2))
        E("v_xor_b32 v%d, v%d, v%d" % (vAL, vAL, vT1))
        E("v_lshlrev_b32 v%d, 4, v%d" % (vAL, vAL))
        E("v_lshl_add_u32 v%d, v%d, 10, v%d" % (vAL, vT2, vAL))
        E("v_subrev_u32 v%d, %d, v%d" % (vVO + q, 1024 * q, vAL))
    E("v_lshlrev_b32 v%d, 4, v%d" % (vAL, vT0))
    E("v_lshl_add_u32 v%d, v%d, 8, v%d" % (vOOFF, vT1, vAL))
    E("s_waitcnt vmcnt(0)")
    stamp(1)
    partition(pcl, pL, pn, pk, pPex, px, pt0, prc, sT, sC, sTOT, sTMP)
    E("s_cmp_ge_u32 s2, %s" % sTOT)
    E("s_cbranch_scc1 K1_EXIT")
    E("v_cmp_ge_u32 vcc, s2, %s" % pPex)
    E("s_nop 3")
    E("s_and_b32 %s, vcc_lo, 0xffff" % sTMP)
    E("s_bcnt1_i32_b32 %s, %s" % (sTMP, sTMP))
    E("s_sub_u32 %s, %s, 1" % (sB, sTMP))
    E("s_nop 3")
    E("v_readlane_b32 %s, %s, %s" % (sNB, pn, sB))
    E("v_readlane_b32 %s, %s, %s" % (sL, pL, sB))
    E("v_readlane_b32 %s, %s, %s" % (sP, pPex, sB))
    E("v_readlane_b32 %s, %s, %s" % (sCL, pcl, sB))
    E("s_nop 3")
    E("s_sub_u32 %s, s2, %s" % (sTMP, sP))
    E("s_and_b32 %s, %s, 3" % (sH, sTMP))
    E("s_lshr_b32 %s, %s, 2" % (sI, sTMP))
    E("s_mul_i32 %s, %s, %s" % (sSTART, sI, sC))
    E("s_sub_u32 %s, %s, %s" % (sCOUNT, sNB, sSTART))
    E("s_min_u32 %s, %s, %s" % (sCOUNT, sCOUNT, sC))
    E("s_sub_u32 %s, %s, 1" % (sTMP2, sNB))
    E("s_lshl_b32 %s, %s, 5" % (sTMP2, sTMP2))
    E("s_sub_u32 %s, %s, %s" % (sTMP2, sL, sTMP2))
    E("s_add_u32 %s, %s, %s" % (sTMP, sSTART, sCOUNT))
    E("s_cmp_eq_u32 %s, %s" % (sTMP, sNB))
    E("s_cselect_b32 %s, %s, 32" % (sNVL, sTMP2))
    E("s_mov_b32 %s, 0x%x" % (sSCALE, SCALE_HEX))
    E("s_cmp_gt_i32 %s, 0" % sCL)
    E("s_cselect_b32 %s, %s, 0" % (sSCALE, sSCALE))
    srd(sAUX, "s10", "s11", 16 * 256 * 4)
    E("v_add_u32 v%d, %s, v%d" % (vT0, sSTART, vLANE))
    E("v_lshlrev_b32 v%d, 1, v%d" % (vT0, vT0))
    E("v_add_u32 v%d, %s, v%d" % (vT0, sPG, vT0))
    E("s_lshl_b32 %s, %s, 8" % (sTMP, sB))
    E("v_add_u32 v%d, %s, v%d" % (vT1, sTMP, vT0))
    E("v_lshlrev_b32 v%d, 2, v%d" % (vT1, vT1))
    E("buffer_load_dword v%d, v%d, s[%d:%d], 0 offen" % (vTAB, vT1, sAUX, sAUX + 3))
    E("s_lshl_b32 %s, %s, 2" % (sTMP, sB))
    E("s_add_u32 %s, %s, %s" % (sTMP, sTMP, sH))
    E("s_lshl_b32 %s, %s, 6" % (sTMP, sTMP))
    E("s_lshl_b32 %s, %s, 4" % (sTMP2, sWAVE))
    E("s_add_u32 %s, %s, %s" % (sTMP, sTMP, sTMP2))
    E("s_lshl_b32 %s, %s, 8" % (sQB, sTMP))
    for s in range(4):
        E("buffer_load_dwordx4 v[%d:%d], v%d, s[%d:%d], %s offen offset:%d" %
          (vQ + 4 * s, vQ + 4 * s + 3, vOOFF, sQS, sQS + 3, sQB, 64 * s))
    E("v_lshlrev_b32 v%d, 4, v%d" % (vT0, vT0))
    E("v_cmp_gt_u32 vcc, %s, v%d" % (sL, vT0))
    E("v_cmp_gt_u32 s[60:61], %s, v%d" % (sCOUNT, vLANE))
    E("s_nop 1")
    E("s_and_b64 vcc, vcc, s[60:61]")
    E("s_lshl_b32 %s, %s, 8" % (sTMP, sH))
    E("v_mov_b32 v%d, %d" % (vT1, KV_BYTES))
    E("s_waitcnt vmcnt(4)")
    stamp(2)
    E("v_lshlrev_b32 v%d, 14, v%d" % (vTAB, vTAB))
    E("v_add_u32 v%d, %s, v%d" % (vTAB, sTMP, vTAB))
    E("v_cndmask_b32 v%d, v%d, v%d, vcc" % (vTAB, vT1, vTAB))
    for i in range(32):
        E("v_mov_b32 v%d, 0" % (vO + i))
    E("v_mov_b32 v%d, 0xff800000" % vM)
    E("v_mov_b32 v%d, 0xff800000" % vMC)
    E("v_mov_b32 v%d, 0" % vL_)
    E("s_mov_b32 %s, 0" % sJ)
    E("s_mov_b32 %s, 0" % sSTEP)

    def dma_issue(slot):
        E("v_readlane_b32 %s, v%d, %s" % (sSOFF, vTAB, sJ))
        E("s_add_u32 m0, %s, %d" % (sWBASE, slot * 16384))
        E("s_add_u32 %s, %s, 1" % (sJ, sJ))
        E("s_nop 2")
        for q in range(4):
            E("buffer_load_dwordx4 v%d, s[%d:%d], %s offen offset:%d nt lds" %
              (vVO + q, sKV, sKV + 3, sSOFF, 1024 * q))

    for st in range(NS - 1):
        dma_issue(st)

    def step(slot):
        base = slot * 16384
        E("s_waitcnt vmcnt(%d)" % (4 * (NS - 2)))
        E("s_barrier")
        dma_issue((slot + NS - 1) % NS)
        for t in range(2):
            for s in range(4):
                r = vK + (t * 4 + s) * 4
                E("ds_read_b128 v[%d:%d], v%d offset:%d" % (r, r + 3, vKA + s, base + t * 4096))
        E("s_add_u32 %s, %s, 1" % (sSTEP, sSTEP))
        E("s_cmp_eq_u32 %s, %s" % (sSTEP, sCOUNT))
        E("s_cselect_b32 %s, %s, 32" % (sNV, sNVL))
        E("s_waitcnt lgkmcnt(0)")
        for s in range(4):
            for t in range(2):
                r = vK + (t * 4 + s) * 4
                c = "0" if s == 0 else "v[%d:%d]" % (vS + 4 * t, vS + 4 * t + 3)
                E("v_mfma_f32_16x16x32_bf16 v[%d:%d], v[%d:%d], v[%d:%d], %s" %
                  (vS + 4 * t, vS + 4 * t + 3, r, r + 3, vQ + 4 * s, vQ + 4 * s + 3, c))
        for dt in range(8):
            r = vV + dt * 4
            E("ds_read_b64_tr_b16 v[%d:%d], v%d offset:%d" % (r, r + 1, vVA + dt, base + 8192))
            E("ds_read_b64_tr_b16 v[%d:%d], v%d offset:%d" % (r + 2, r + 3, vVA + dt, base + 8192 + 4096))
        E("s_cmp_lt_u32 %s, 32" % sNV)
        E("s_nop 7")
        E("s_cbranch_scc0 K1_NOMASK_%d" % slot)
        for t in range(2):
            for i in range(4):
                E("s_sub_u32 %s, %s, %d" % (sTMP, sNV, 16 * t + i))
                E("v_mov_b32 v%d, 0xff800000" % vT0)
                E("v_cmp_gt_i32 vcc, %s, v%d" % (sTMP, vKIDX))
                E("s_nop 1")
                E("v_cndmask_b32 v%d, v%d, v%d, vcc" % (vS + 4 * t + i, vT0, vS + 4 * t + i))
        E("K1_NOMASK_%d:" % slot)
        E("v_max3_f32 v%d, v%d, v%d, v%d" % (vT0, vS, vS + 1, vS + 2))
        E("v_max3_f32 v%d, v%d, v%d, v%d" % (vT1, vS + 3, vS + 4, vS + 5))
        E("v_max3_f32 v%d, v%d, v%d, v%d" % (vT0, vT0, vS + 6, vS + 7))
        E("v_max3_f32 v%d, v%d, v%d, v%d" % (vT0, vT0, vT1, vM))
        E("v_mov_b32 v%d, v%d" % (vT1, vT0))
        E("s_nop 1")
        E("v_permlane16_swap_b32 v%d, v%d" % (vT0, vT1))
        E("v_max_f32 v%d, v%d, v%d" % (vT0, vT0, vT1))
        E("v_mov_b32 v%d, v%d" % (vT1, vT0))
        E("s_nop 1")
        E("v_permlane32_swap_b32 v%d, v%d" % (vT0, vT1))
        E("v_max_f32 v%d, v%d, v%d" % (vM, vT0, vT1))
        E("v_mul_f32 v%d, %s, v%d" % (vMCN, sSCALE, vM))
        E("v_sub_f32 v%d, v%d, v%d" % (vT0, vMC, vMCN))
        E("v_exp_f32 v%d, v%d" % (vAL, vT0))
        E("v_mov_b32 v%d, v%d" % (vMC, vMCN))
        for i in range(8):
            E("v_fma_f32 v%d, v%d, %s, -v%d" % (vS + i, vS + i, sSCALE, vMCN))
        for i in range(8):
            E("v_exp_f32 v%d, v%d" % (vS + i, vS + i))
        E("v_mul_f32 v%d, v%d, v%d" % (vL_, vL_, vAL))
        E("v_add_f32 v%d, v%d, v%d" % (vT0, vS, vS + 1))
        E("v_add_f32 v%d, v%d, v%d" % (vT1, vS + 2, vS + 3))
        E("v_add_f32 v%d, v%d, v%d" % (vT2, vS + 4, vS + 5))
        E("v_add_f32 v%d, v%d, v%d" % (vT0, vT0, vT1))
        E("v_add_f32 v%d, v%d, v%d" % (vT1, vS + 6, vS + 7))
        E("v_add_f32 v%d, v%d, v%d" % (vT2, vT2, vT1))
        E("v_add_f32 v%d, v%d, v%d" % (vT0, vT0, vT2))
        E("v_add_f32 v%d, v%d, v%d" % (vL_, vL_, vT0))
        for i in range(4):
            E("v_cvt_pk_bf16_f32 v%d, v%d, v%d" % (vP + i, vS + 2 * i, vS + 2 * i + 1))
        for i in range(32):
            E("v_mul_f32 v%d, v%d, v%d" % (vO + i, vO + i, vAL))
        E("s_waitcnt lgkmcnt(0)")
        for dt in range(8):
            E("v_mfma_f32_16x16x32_bf16 v[%d:%d], v[%d:%d], v[%d:%d], v[%d:%d]" %
              (vO + 4 * dt, vO + 4 * dt + 3, vV + 4 * dt, vV + 4 * dt + 3, vP, vP + 3,
               vO + 4 * dt, vO + 4 * dt + 3))
        E("s_cmp_ge_u32 %s, %s" % (sSTEP, sCOUNT))
        E("s_cbranch_scc1 K1_DONE")

    E("s_waitcnt vmcnt(%d)" % (4 * (NS - 2)))
    stamp(3)
    E("K1_LOOP:")
    for slot in range(NS):
        step(slot)
    E("s_branch K1_LOOP")
    E("K1_DONE:")
    stamp(4)
    E("v_mov_b32 v%d, v%d" % (vT1, vL_))
    E("s_nop 1")
    E("v_permlane16_swap_b32 v%d, v%d" % (vL_, vT1))
    E("v_add_f32 v%d, v%d, v%d" % (vL_, vL_, vT1))
    E("v_mov_b32 v%d, v%d" % (vT1, vL_))
    E("s_nop 1")
    E("v_permlane32_swap_b32 v%d, v%d" % (vL_, vT1))
    E("v_add_f32 v%d, v%d, v%d" % (vL_, vL_, vT1))
    E("v_and_b32 v%d, 15, v%d" % (vT1, vLANE))
    E("v_lshrrev_b32 v%d, 4, v%d" % (vT0, vLANE))
    E("s_lshl_b32 %s, %s, 4" % (sTMP, sWAVE))
    E("v_add_u32 v%d, %s, v%d" % (vT1, sTMP, vT1))
    E("v_lshlrev_b32 v%d, 4, v%d" % (vT0, vT0))
    E("v_lshl_add_u32 v%d, v%d, 9, v%d" % (vOOFF, vT1, vT0))
    E("v_lshlrev_b32 v%d, 3, v%d" % (vT1, vT1))
    E("s_lshl_b32 %s, s2, 15" % sTMP)
    E("s_lshl_b32 %s, s2, 9" % sTMP2)
    E("s_add_u32 %s, %s, %d" % (sTMP2, sTMP2, ML_BASE))
    E("s_nop 4")
    for dt in range(8):
        E("buffer_store_dwordx4 v[%d:%d], v%d, s[%d:%d], %s offen offset:%d" %
          (vO + 4 * dt, vO + 4 * dt + 3, vOOFF, sWS, sWS + 3, sTMP, 64 * dt))
    E("v_mov_b32 v%d, v%d" % (vS, vMC))
    E("v_mov_b32 v%d, v%d" % (vS + 1, vL_))
    E("buffer_store_dwordx2 v[%d:%d], v%d, s[%d:%d], %s offen" % (vS, vS + 1, vT1, sWS, sWS + 3, sTMP2))
    if STAMP:
        E("s_waitcnt vmcnt(0)")
        stamp(5)
        for i in range(6):
            E("v_mov_b32 v%d, s%d" % (vS + i, 64 + i))
        E("v_mov_b32 v%d, s2" % (vS + 6))
        E("v_mov_b32 v%d, %s" % (vS + 7, sCOUNT))
        E("s_lshl_b32 %s, s2, 7" % sTMP)
        E("s_lshl_b32 %s, %s, 5" % (sTMP2, sWAVE))
        E("s_add_u32 %s, %s, %s" % (sTMP, sTMP, sTMP2))
        E("s_add_u32 %s, %s, %d" % (sTMP, sTMP, 128 << 20))
        E("v_mov_b32 v%d, 0" % vT0)
        E("s_nop 4")
        E("buffer_store_dwordx4 v[%d:%d], v%d, s[%d:%d], %s offen" % (vS, vS + 3, vT0, sWS, sWS + 3, sTMP))
        E("buffer_store_dwordx4 v[%d:%d], v%d, s[%d:%d], %s offen offset:16" % (vS + 4, vS + 7, vT0, sWS, sWS + 3, sTMP))
    E("K1_EXIT:")
    E("s_waitcnt vmcnt(0)")
    E("s_endpgm")
    return NV

def kernel2():
    vACC = 8
    vOB = 16
    vML = 80
    vM, vL_, vMN, vA, vW, vT0, vT1, vOOFF, vMLOFF, vLANE = range(96, 106)
    pcl, pL, pn, pk, pPex, px, pt0, prc = ["v%d" % i for i in range(106, 114)]
    NV = 114
    sWS = 32
    sAUX = 24
    sOUT = 28
    (sB, sH, sBH, sK, sP, sI, sT, sC, sTOT, sTMP, sTMP2) = ["s%d" % i for i in range(36, 47)]
    sSO = [48 + u for u in range(8)]
    sSM = [56 + u for u in range(8)]
    sLIM = [64 + u for u in range(8)]
    E("%s_combine_kernel:" % KN)
    E("s_load_dwordx16 s[4:19], s[0:1], 0")
    E("s_cmp_ge_u32 s2, 256")
    E("s_cbranch_scc1 K2_EXIT")
    E("v_and_b32 v%d, 63, v0" % vLANE)
    E("v_and_b32 v%d, 15, v0" % vT1)
    E("v_lshlrev_b32 v%d, 2, v%d" % (vT0, vT1))
    E("s_waitcnt lgkmcnt(0)")
    srd(sAUX, "s12", "s13", 64)
    E("buffer_load_dword %s, v%d, s[%d:%d], 0 offen" % (pcl, vT0, sAUX, sAUX + 3))
    srd(sWS, "s18", "s19", WS_BYTES)
    srd(sOUT, "s14", "s15", 16 * 32 * 8 * 128 * 2)
    E("s_lshr_b32 %s, s2, 2" % sBH)
    E("s_lshr_b32 %s, %s, 2" % (sB, sBH))
    E("s_and_b32 %s, %s, 3" % (sH, sBH))
    E("s_and_b32 %s, s2, 3" % sTMP)
    E("s_lshl_b32 %s, %s, 4" % (sTMP, sTMP))
    E("v_lshrrev_b32 v%d, 4, v0" % vT0)
    E("v_add_u32 v%d, %s, v%d" % (vT0, sTMP, vT0))
    E("v_lshlrev_b32 v%d, 5, v%d" % (vT1, vT1))
    E("v_lshl_add_u32 v%d, v%d, 9, v%d" % (vOOFF, vT0, vT1))
    E("v_lshlrev_b32 v%d, 3, v%d" % (vMLOFF, vT0))
    E("s_waitcnt vmcnt(0)")
    partition(pcl, pL, pn, pk, pPex, px, pt0, prc, sT, sC, sTOT, sTMP)
    E("v_readlane_b32 %s, %s, %s" % (sK, pk, sB))
    E("v_readlane_b32 %s, %s, %s" % (sP, pPex, sB))
    for j in range(8):
        E("v_mov_b32 v%d, 0" % (vACC + j))
    E("v_mov_b32 v%d, 0xff800000" % vM)
    E("v_mov_b32 v%d, 0" % vL_)
    E("s_mov_b32 %s, 0" % sI)
    E("s_mov_b32 s72, 0x7f800000")
    E("s_mov_b32 s73, 0xff800000")
    E("K2_BATCH:")
    for u in range(8):
        E("s_add_u32 %s, %s, %d" % (sTMP, sI, u))
        E("s_cmp_lt_u32 %s, %s" % (sTMP, sK))
        E("s_cselect_b32 s%d, s72, s73" % sLIM[u])
        E("s_sub_u32 %s, %s, 1" % (sTMP2, sK))
        E("s_min_u32 %s, %s, %s" % (sTMP, sTMP, sTMP2))
        E("s_lshl_b32 %s, %s, 2" % (sTMP, sTMP))
        E("s_add_u32 %s, %s, %s" % (sTMP, sTMP, sP))
        E("s_add_u32 %s, %s, %s" % (sTMP, sTMP, sH))
        E("s_lshl_b32 s%d, %s, 15" % (sSO[u], sTMP))
        E("s_lshl_b32 s%d, %s, 9" % (sSM[u], sTMP))
        E("s_add_u32 s%d, s%d, %d" % (sSM[u], sSM[u], ML_BASE))
        E("buffer_load_dwordx2 v[%d:%d], v%d, s[%d:%d], s%d offen" %
          (vML + 2 * u, vML + 2 * u + 1, vMLOFF, sWS, sWS + 3, sSM[u]))
        E("buffer_load_dwordx4 v[%d:%d], v%d, s[%d:%d], s%d offen" %
          (vOB + 8 * u, vOB + 8 * u + 3, vOOFF, sWS, sWS + 3, sSO[u]))
        E("buffer_load_dwordx4 v[%d:%d], v%d, s[%d:%d], s%d offen offset:16" %
          (vOB + 8 * u + 4, vOB + 8 * u + 7, vOOFF, sWS, sWS + 3, sSO[u]))
    for u in range(8):
        E("s_waitcnt vmcnt(%d)" % (3 * (7 - u)))
        E("v_min_f32 v%d, s%d, v%d" % (vT0, sLIM[u], vML + 2 * u))
        E("v_max_f32 v%d, v%d, v%d" % (vMN, vM, vT0))
        E("v_sub_f32 v%d, v%d, v%d" % (vA, vM, vMN))
        E("v_sub_f32 v%d, v%d, v%d" % (vW, vT0, vMN))
        E("v_exp_f32 v%d, v%d" % (vA, vA))
        E("v_exp_f32 v%d, v%d" % (vW, vW))
        E("v_mov_b32 v%d, v%d" % (vM, vMN))
        E("v_mul_f32 v%d, v%d, v%d" % (vL_, vL_, vA))
        E("v_fma_f32 v%d, v%d, v%d, v%d" % (vL_, vML + 2 * u + 1, vW, vL_))
        for j in range(8):
            E("v_mul_f32 v%d, v%d, v%d" % (vACC + j, vACC + j, vA))
            E("v_fma_f32 v%d, v%d, v%d, v%d" % (vACC + j, vOB + 8 * u + j, vW, vACC + j))
    E("s_add_u32 %s, %s, 8" % (sI, sI))
    E("s_cmp_lt_u32 %s, %s" % (sI, sK))
    E("s_cbranch_scc1 K2_BATCH")
    E("v_rcp_f32 v%d, v%d" % (vW, vL_))
    E("s_nop 0")
    for j in range(8):
        E("v_mul_f32 v%d, v%d, v%d" % (vACC + j, vACC + j, vW))
    for j in range(4):
        E("v_cvt_pk_bf16_f32 v%d, v%d, v%d" % (vOB + j, vACC + 2 * j, vACC + 2 * j + 1))
    E("v_lshrrev_b32 v%d, 1, v%d" % (vT0, vOOFF))
    E("s_lshl_b32 %s, %s, 14" % (sTMP, sBH))
    E("s_nop 4")
    E("buffer_store_dwordx4 v[%d:%d], v%d, s[%d:%d], %s offen" % (vOB, vOB + 3, vT0, sOUT, sOUT + 3, sTMP))
    E("K2_EXIT:")
    E("s_waitcnt vmcnt(0)")
    E("s_endpgm")
    return NV

def descriptor(name, nv, nsgpr=80):
    E('.section .rodata,"a"')
    E(".p2align 6")
    E(".amdhsa_kernel %s" % name)
    E("  .amdhsa_next_free_vgpr %d" % nv)
    E("  .amdhsa_next_free_sgpr %d" % nsgpr)
    E("  .amdhsa_accum_offset %d" % ((nv + 3) // 4 * 4))
    E("  .amdhsa_group_segment_fixed_size 0")
    E("  .amdhsa_kernarg_size 64")
    E("  .amdhsa_user_sgpr_count 2")
    E("  .amdhsa_user_sgpr_kernarg_segment_ptr 1")
    E("  .amdhsa_system_sgpr_workgroup_id_x 1")
    E(".end_amdhsa_kernel")

out.append(HEADER.rstrip("\n"))
out.append("; @launch kernel=%s_kernel grid=(%d,1,1) block=(256,1,1) lds=%d" % (KN, GRID1, NS * 16384))
out.append("; @launch kernel=%s_combine_kernel grid=(256,1,1) block=(256,1,1) lds=0" % KN)
out.append('.amdgcn_target "amdgcn-amd-amdhsa--gfx950"')
out.append(".text")
out.append(".globl %s_kernel" % KN)
out.append(".p2align 8")
out.append(".type %s_kernel,@function" % KN)
nv1 = kernel1()
out.append(".globl %s_combine_kernel" % KN)
out.append(".p2align 8")
out.append(".type %s_combine_kernel,@function" % KN)
nv2 = kernel2()
descriptor("%s_kernel" % KN, nv1)
descriptor("%s_combine_kernel" % KN, nv2)
open(sys.argv[1], "w").write("\n".join(out) + "\n")
```

```python
import sys, os
STAMP = os.environ.get("STAMP") is not None

NS = 4
GRID1 = 512
WTARGET = 448
MAGIC448 = 9586981
KV_BYTES = 4100 * 16 * 4 * 128 * 2
WS_BYTES = 268697600
ML_BASE = 16 * 1024 * 1024
SCALE_HEX = 0x3E0293EE

out = []
def stamp(i):
    if STAMP:
        E("s_memrealtime s[62:63]")
        E("s_waitcnt lgkmcnt(0)")
        E("s_mov_b32 s%d, s62" % (64 + i))
def E(s=""):
    out.append("    " + s if s and not s.endswith(":") else s)

HEADER = """; Kernarg layout for this problem (64 bytes, ptrs only, base s[0:1]):
"""

KN = "standalone__paged_block_table_kv_pagedattention__sampling"

def partition(vcl, vL, vn, vk, vPex, vx, vt0, vrc, sT, sc, stotal, stmp):
    E("v_mov_b32 %s, 0x1000" % vL)
    E("v_min_i32 %s, %s, %s" % (vt0, vcl, vL))
    E("v_cmp_lt_i32 vcc, 0, %s" % vcl)
    E("s_nop 1")
    E("v_cndmask_b32 %s, %s, %s, vcc" % (vL, vL, vt0))
    E("v_add_u32 %s, 31, %s" % (vn, vL))
    E("v_lshrrev_b32 %s, 5, %s" % (vn, vn))
    E("v_mov_b32 %s, %s" % (vx, vn))
    for sh in (1, 2, 4, 8):
        E("s_nop 1")
        E("v_add_u32_dpp %s, %s, %s row_shr:%d row_mask:0xf bank_mask:0xf bound_ctrl:0" % (vx, vx, vx, sh))
    E("s_nop 1")
    E("v_readlane_b32 %s, %s, 15" % (sT, vx))
    E("s_nop 3")
    E("s_lshl_b32 %s, %s, 2" % (sT, sT))
    E("s_add_u32 %s, %s, %d" % (stmp, sT, WTARGET - 1))
    E("s_mov_b32 %s, %d" % (sc, MAGIC448))
    E("s_mul_hi_u32 %s, %s, %s" % (sc, stmp, sc))
    E("v_cvt_f32_u32 %s, %s" % (vrc, sc))
    E("v_rcp_f32 %s, %s" % (vrc, vrc))
    E("v_add_u32 %s, %s, %s" % (vt0, sc, vn))
    E("v_cvt_f32_u32 %s, %s" % (vt0, vt0))
    E("v_add_f32 %s, -0.5, %s" % (vt0, vt0))
    E("v_mul_f32 %s, %s, %s" % (vt0, vt0, vrc))
    E("v_cvt_u32_f32 %s, %s" % (vk, vt0))
    E("v_lshlrev_b32 %s, 2, %s" % (vx, vk))
    for sh in (1, 2, 4, 8):
        E("s_nop 1")
        E("v_add_u32_dpp %s, %s, %s row_shr:%d row_mask:0xf bank_mask:0xf bound_ctrl:0" % (vx, vx, vx, sh))
    E("v_lshlrev_b32 %s, 2, %s" % (vt0, vk))
    E("v_sub_u32 %s, %s, %s" % (vPex, vx, vt0))
    E("s_nop 0")
    E("v_readlane_b32 %s, %s, 15" % (stotal, vx))
    E("s_nop 3")

def srd(base, plo, phi, nbytes):
    E("s_mov_b32 s%d, %s" % (base, plo))
    E("s_and_b32 s%d, %s, 0xffff" % (base + 1, phi))
    E("s_mov_b32 s%d, %d" % (base + 2, nbytes))
    E("s_mov_b32 s%d, 0x20000" % (base + 3))

def kernel1():
    vQ = 8
    vO = 24
    vK = 56
    vV = 88
    vS = 120
    vP = 128
    vKA = 132
    vVA = 136
    vVO = 144
    vTAB = 148
    vKIDX = 149
    vM = 150
    vMC = 151
    vL_ = 152
    vT0 = 153
    vT1 = 154
    vAL = 155
    vMCN = 156
    vLANE = 157
    vOOFF = 158
    vT2 = 159
    vX = 160
    vY = 192
    vMLOFF = 224
    NV = 225
    pcl, pL, pn, pk, pPex, px, pt0, prc = ["v%d" % (vK + i) for i in range(8)]
    sKV = 20
    sAUX = 24
    sQS = 28
    sWS = 32
    (sWAVE, sB, sH, sI, sSTART, sCOUNT, sNB, sL, sC, sT, sTOT, sNVL, sSCALE, sJ,
     sSTEP, sSOFF, sWBASE, sTMP, sTMP2, sCL, sP, sNV, sQB, sPG) = ["s%d" % i for i in range(36, 60)]
    sK, sBH = "s74", "s75"

    E("%s_kernel:" % KN)
    stamp(0)
    E("s_load_dwordx16 s[4:19], s[0:1], 0")
    E("v_and_b32 v%d, 63, v0" % vLANE)
    E("v_lshrrev_b32 v%d, 6, v0" % vT0)
    E("v_and_b32 v%d, 15, v0" % vT1)
    E("v_readfirstlane_b32 %s, v%d" % (sWAVE, vT0))
    E("v_lshlrev_b32 v%d, 2, v%d" % (vT0, vT1))
    E("s_waitcnt lgkmcnt(0)")
    srd(sAUX, "s12", "s13", 64)
    E("buffer_load_dword %s, v%d, s[%d:%d], 0 offen" % (pcl, vT0, sAUX, sAUX + 3))
    E("s_and_b32 %s, %s, 1" % (sTMP, sWAVE))
    E("s_cmp_eq_u32 %s, 0" % sTMP)
    E("s_cselect_b32 s%d, s6, s8" % sKV)
    E("s_cselect_b32 s%d, s7, s9" % (sKV + 1))
    E("s_and_b32 s%d, s%d, 0xffff" % (sKV + 1, sKV + 1))
    E("s_mov_b32 s%d, %d" % (sKV + 2, KV_BYTES))
    E("s_mov_b32 s%d, 0x20000" % (sKV + 3))
    srd(sQS, "s4", "s5", 16 * 32 * 8 * 128 * 2)
    srd(sWS, "s18", "s19", WS_BYTES)
    E("s_lshr_b32 %s, %s, 1" % (sPG, sWAVE))
    E("s_lshl_b32 %s, %s, 13" % (sWBASE, sTMP))
    E("s_lshl_b32 %s, %s, 12" % (sTMP2, sPG))
    E("s_add_u32 %s, %s, %s" % (sWBASE, sWBASE, sTMP2))
    E("v_lshrrev_b32 v%d, 4, v%d" % (vT0, vLANE))
    for s in range(4):
        E("v_add_u32 v%d, %d, v%d" % (vT2, 4 * s, vT0))
        E("v_xor_b32 v%d, v%d, v%d" % (vT2, vT2, vT1))
        E("v_lshlrev_b32 v%d, 4, v%d" % (vT2, vT2))
        E("v_lshl_add_u32 v%d, v%d, 8, v%d" % (vKA + s, vT1, vT2))
    E("v_lshrrev_b32 v%d, 2, v%d" % (vAL, vT1))
    E("v_lshl_add_u32 v%d, v%d, 2, v%d" % (vAL, vT0, vAL))
    E("v_and_b32 v%d, 7, v%d" % (vMCN, vAL))
    E("v_and_b32 v%d, 3, v%d" % (vM, vT1))
    E("v_lshlrev_b32 v%d, 3, v%d" % (vM, vM))
    E("v_lshl_add_u32 v%d, v%d, 8, v%d" % (vM, vAL, vM))
    for dt in range(8):
        E("v_xor_b32 v%d, %d, v%d" % (vT2, dt, vMCN))
        E("v_lshl_add_u32 v%d, v%d, 5, v%d" % (vVA + dt, vT2, vM))
    E("v_lshlrev_b32 v%d, 2, v%d" % (vKIDX, vT0))
    E("s_cmp_eq_u32 %s, 0" % sTMP)
    E("s_cselect_b32 %s, 0, 1" % sTMP2)
    for q in range(4):
        E("v_add_u32 v%d, %d, v%d" % (vT2, 4 * q, vT0))
        E("v_and_b32 v%d, 7, v%d" % (vAL, vT2))
        E("v_lshlrev_b32 v%d, 1, v%d" % (vAL, vAL))
        E("v_cmp_eq_u32_e64 vcc, 0, %s" % sTMP2)
        E("s_nop 1")
        E("v_cndmask_b32 v%d, v%d, v%d, vcc" % (vAL, vAL, vT2))
        E("v_xor_b32 v%d, v%d, v%d" % (vAL, vAL, vT1))
        E("v_lshlrev_b32 v%d, 4, v%d" % (vAL, vAL))
        E("v_lshl_add_u32 v%d, v%d, 10, v%d" % (vAL, vT2, vAL))
        E("v_subrev_u32 v%d, %d, v%d" % (vVO + q, 1024 * q, vAL))
    E("v_lshlrev_b32 v%d, 4, v%d" % (vAL, vT0))
    E("v_lshl_add_u32 v%d, v%d, 8, v%d" % (vOOFF, vT1, vAL))
    E("s_waitcnt vmcnt(0)")
    stamp(1)
    partition(pcl, pL, pn, pk, pPex, px, pt0, prc, sT, sC, sTOT, sTMP)
    E("s_cmp_ge_u32 s2, %s" % sTOT)
    E("s_cbranch_scc1 K1_EXIT")
    E("v_cmp_ge_u32 vcc, s2, %s" % pPex)
    E("s_nop 3")
    E("s_and_b32 %s, vcc_lo, 0xffff" % sTMP)
    E("s_bcnt1_i32_b32 %s, %s" % (sTMP, sTMP))
    E("s_sub_u32 %s, %s, 1" % (sB, sTMP))
    E("s_nop 3")
    E("v_readlane_b32 %s, %s, %s" % (sNB, pn, sB))
    E("v_readlane_b32 %s, %s, %s" % (sL, pL, sB))
    E("v_readlane_b32 %s, %s, %s" % (sP, pPex, sB))
    E("v_readlane_b32 %s, %s, %s" % (sCL, pcl, sB))
    E("v_readlane_b32 %s, %s, %s" % (sK, pk, sB))
    E("s_nop 3")
    E("s_sub_u32 %s, s2, %s" % (sTMP, sP))
    E("s_and_b32 %s, %s, 3" % (sH, sTMP))
    E("s_lshr_b32 %s, %s, 2" % (sI, sTMP))
    E("s_mul_i32 %s, %s, %s" % (sSTART, sI, sC))
    E("s_sub_u32 %s, %s, %s" % (sCOUNT, sNB, sSTART))
    E("s_min_u32 %s, %s, %s" % (sCOUNT, sCOUNT, sC))
    E("s_sub_u32 %s, %s, 1" % (sTMP2, sNB))
    E("s_lshl_b32 %s, %s, 5" % (sTMP2, sTMP2))
    E("s_sub_u32 %s, %s, %s" % (sTMP2, sL, sTMP2))
    E("s_add_u32 %s, %s, %s" % (sTMP, sSTART, sCOUNT))
    E("s_cmp_eq_u32 %s, %s" % (sTMP, sNB))
    E("s_cselect_b32 %s, %s, 32" % (sNVL, sTMP2))
    E("s_mov_b32 %s, 0x%x" % (sSCALE, SCALE_HEX))
    E("s_cmp_gt_i32 %s, 0" % sCL)
    E("s_cselect_b32 %s, %s, 0" % (sSCALE, sSCALE))
    srd(sAUX, "s10", "s11", 16 * 256 * 4)
    E("v_add_u32 v%d, %s, v%d" % (vT0, sSTART, vLANE))
    E("v_lshlrev_b32 v%d, 1, v%d" % (vT0, vT0))
    E("v_add_u32 v%d, %s, v%d" % (vT0, sPG, vT0))
    E("s_lshl_b32 %s, %s, 8" % (sTMP, sB))
    E("v_add_u32 v%d, %s, v%d" % (vT1, sTMP, vT0))
    E("v_lshlrev_b32 v%d, 2, v%d" % (vT1, vT1))
    E("buffer_load_dword v%d, v%d, s[%d:%d], 0 offen" % (vTAB, vT1, sAUX, sAUX + 3))
    E("s_lshl_b32 %s, %s, 2" % (sTMP, sB))
    E("s_add_u32 %s, %s, %s" % (sTMP, sTMP, sH))
    E("s_lshl_b32 %s, %s, 6" % (sTMP, sTMP))
    E("s_lshl_b32 %s, %s, 4" % (sTMP2, sWAVE))
    E("s_add_u32 %s, %s, %s" % (sTMP, sTMP, sTMP2))
    E("s_lshl_b32 %s, %s, 8" % (sQB, sTMP))
    for s in range(4):
        E("buffer_load_dwordx4 v[%d:%d], v%d, s[%d:%d], %s offen offset:%d" %
          (vQ + 4 * s, vQ + 4 * s + 3, vOOFF, sQS, sQS + 3, sQB, 64 * s))
    E("v_lshlrev_b32 v%d, 4, v%d" % (vT0, vT0))
    E("v_cmp_gt_u32 vcc, %s, v%d" % (sL, vT0))
    E("v_cmp_gt_u32 s[60:61], %s, v%d" % (sCOUNT, vLANE))
    E("s_nop 1")
    E("s_and_b64 vcc, vcc, s[60:61]")
    E("s_lshl_b32 %s, %s, 8" % (sTMP, sH))
    E("v_mov_b32 v%d, %d" % (vT1, KV_BYTES))
    E("s_waitcnt vmcnt(4)")
    stamp(2)
    E("v_lshlrev_b32 v%d, 14, v%d" % (vTAB, vTAB))
    E("v_add_u32 v%d, %s, v%d" % (vTAB, sTMP, vTAB))
    E("v_cndmask_b32 v%d, v%d, v%d, vcc" % (vTAB, vT1, vTAB))
    for i in range(32):
        E("v_mov_b32 v%d, 0" % (vO + i))
    E("v_mov_b32 v%d, 0xff800000" % vM)
    E("v_mov_b32 v%d, 0xff800000" % vMC)
    E("v_mov_b32 v%d, 0" % vL_)
    E("s_mov_b32 %s, 0" % sJ)
    E("s_mov_b32 %s, 0" % sSTEP)

    def dma_issue(slot):
        E("v_readlane_b32 %s, v%d, %s" % (sSOFF, vTAB, sJ))
        E("s_add_u32 m0, %s, %d" % (sWBASE, slot * 16384))
        E("s_add_u32 %s, %s, 1" % (sJ, sJ))
        E("s_nop 2")
        for q in range(4):
            E("buffer_load_dwordx4 v%d, s[%d:%d], %s offen offset:%d nt lds" %
              (vVO + q, sKV, sKV + 3, sSOFF, 1024 * q))

    for st in range(NS - 1):
        dma_issue(st)

    def step(slot):
        base = slot * 16384
        E("s_waitcnt vmcnt(%d)" % (4 * (NS - 2)))
        E("s_barrier")
        dma_issue((slot + NS - 1) % NS)
        for t in range(2):
            for s in range(4):
                r = vK + (t * 4 + s) * 4
                E("ds_read_b128 v[%d:%d], v%d offset:%d" % (r, r + 3, vKA + s, base + t * 4096))
        E("s_add_u32 %s, %s, 1" % (sSTEP, sSTEP))
        E("s_cmp_eq_u32 %s, %s" % (sSTEP, sCOUNT))
        E("s_cselect_b32 %s, %s, 32" % (sNV, sNVL))
        E("s_waitcnt lgkmcnt(0)")
        for s in range(4):
            for t in range(2):
                r = vK + (t * 4 + s) * 4
                c = "0" if s == 0 else "v[%d:%d]" % (vS + 4 * t, vS + 4 * t + 3)
                E("v_mfma_f32_16x16x32_bf16 v[%d:%d], v[%d:%d], v[%d:%d], %s" %
                  (vS + 4 * t, vS + 4 * t + 3, r, r + 3, vQ + 4 * s, vQ + 4 * s + 3, c))
        for dt in range(8):
            r = vV + dt * 4
            E("ds_read_b64_tr_b16 v[%d:%d], v%d offset:%d" % (r, r + 1, vVA + dt, base + 8192))
            E("ds_read_b64_tr_b16 v[%d:%d], v%d offset:%d" % (r + 2, r + 3, vVA + dt, base + 8192 + 4096))
        E("s_cmp_lt_u32 %s, 32" % sNV)
        E("s_nop 7")
        E("s_cbranch_scc0 K1_NOMASK_%d" % slot)
        for t in range(2):
            for i in range(4):
                E("s_sub_u32 %s, %s, %d" % (sTMP, sNV, 16 * t + i))
                E("v_mov_b32 v%d, 0xff800000" % vT0)
                E("v_cmp_gt_i32 vcc, %s, v%d" % (sTMP, vKIDX))
                E("s_nop 1")
                E("v_cndmask_b32 v%d, v%d, v%d, vcc" % (vS + 4 * t + i, vT0, vS + 4 * t + i))
        E("K1_NOMASK_%d:" % slot)
        E("v_max3_f32 v%d, v%d, v%d, v%d" % (vT0, vS, vS + 1, vS + 2))
        E("v_max3_f32 v%d, v%d, v%d, v%d" % (vT1, vS + 3, vS + 4, vS + 5))
        E("v_max3_f32 v%d, v%d, v%d, v%d" % (vT0, vT0, vS + 6, vS + 7))
        E("v_max3_f32 v%d, v%d, v%d, v%d" % (vT0, vT0, vT1, vM))
        E("v_mov_b32 v%d, v%d" % (vT1, vT0))
        E("s_nop 1")
        E("v_permlane16_swap_b32 v%d, v%d" % (vT0, vT1))
        E("v_max_f32 v%d, v%d, v%d" % (vT0, vT0, vT1))
        E("v_mov_b32 v%d, v%d" % (vT1, vT0))
        E("s_nop 1")
        E("v_permlane32_swap_b32 v%d, v%d" % (vT0, vT1))
        E("v_max_f32 v%d, v%d, v%d" % (vM, vT0, vT1))
        E("v_mul_f32 v%d, %s, v%d" % (vMCN, sSCALE, vM))
        E("v_sub_f32 v%d, v%d, v%d" % (vT0, vMC, vMCN))
        E("v_exp_f32 v%d, v%d" % (vAL, vT0))
        E("v_mov_b32 v%d, v%d" % (vMC, vMCN))
        for i in range(8):
            E("v_fma_f32 v%d, v%d, %s, -v%d" % (vS + i, vS + i, sSCALE, vMCN))
        for i in range(8):
            E("v_exp_f32 v%d, v%d" % (vS + i, vS + i))
        E("v_mul_f32 v%d, v%d, v%d" % (vL_, vL_, vAL))
        E("v_add_f32 v%d, v%d, v%d" % (vT0, vS, vS + 1))
        E("v_add_f32 v%d, v%d, v%d" % (vT1, vS + 2, vS + 3))
        E("v_add_f32 v%d, v%d, v%d" % (vT2, vS + 4, vS + 5))
        E("v_add_f32 v%d, v%d, v%d" % (vT0, vT0, vT1))
        E("v_add_f32 v%d, v%d, v%d" % (vT1, vS + 6, vS + 7))
        E("v_add_f32 v%d, v%d, v%d" % (vT2, vT2, vT1))
        E("v_add_f32 v%d, v%d, v%d" % (vT0, vT0, vT2))
        E("v_add_f32 v%d, v%d, v%d" % (vL_, vL_, vT0))
        for i in range(4):
            E("v_cvt_pk_bf16_f32 v%d, v%d, v%d" % (vP + i, vS + 2 * i, vS + 2 * i + 1))
        for i in range(32):
            E("v_mul_f32 v%d, v%d, v%d" % (vO + i, vO + i, vAL))
        E("s_waitcnt lgkmcnt(0)")
        for dt in range(8):
            E("v_mfma_f32_16x16x32_bf16 v[%d:%d], v[%d:%d], v[%d:%d], v[%d:%d]" %
              (vO + 4 * dt, vO + 4 * dt + 3, vV + 4 * dt, vV + 4 * dt + 3, vP, vP + 3,
               vO + 4 * dt, vO + 4 * dt + 3))
        E("s_cmp_ge_u32 %s, %s" % (sSTEP, sCOUNT))
        E("s_cbranch_scc1 K1_DONE")

    E("s_waitcnt vmcnt(%d)" % (4 * (NS - 2)))
    stamp(3)
    E("K1_LOOP:")
    for slot in range(NS):
        step(slot)
    E("s_branch K1_LOOP")
    E("K1_DONE:")
    stamp(4)
    E("v_mov_b32 v%d, v%d" % (vT1, vL_))
    E("s_nop 1")
    E("v_permlane16_swap_b32 v%d, v%d" % (vL_, vT1))
    E("v_add_f32 v%d, v%d, v%d" % (vL_, vL_, vT1))
    E("v_mov_b32 v%d, v%d" % (vT1, vL_))
    E("s_nop 1")
    E("v_permlane32_swap_b32 v%d, v%d" % (vL_, vT1))
    E("v_add_f32 v%d, v%d, v%d" % (vL_, vL_, vT1))
    E("v_and_b32 v%d, 15, v%d" % (vT1, vLANE))
    E("v_lshrrev_b32 v%d, 4, v%d" % (vT0, vLANE))
    E("s_lshl_b32 %s, %s, 4" % (sTMP, sWAVE))
    E("v_add_u32 v%d, %s, v%d" % (vT1, sTMP, vT1))
    E("v_lshlrev_b32 v%d, 4, v%d" % (vT0, vT0))
    E("v_lshl_add_u32 v%d, v%d, 9, v%d" % (vOOFF, vT1, vT0))
    E("v_lshlrev_b32 v%d, 3, v%d" % (vMLOFF, vT1))
    E("s_lshl_b32 %s, s2, 15" % sTMP)
    E("s_lshl_b32 %s, s2, 9" % sTMP2)
    E("s_add_u32 %s, %s, %d" % (sTMP2, sTMP2, ML_BASE))
    E("v_mov_b32 v%d, v%d" % (vS, vMC))
    E("v_mov_b32 v%d, v%d" % (vS + 1, vL_))
    E("s_nop 4")
    for dt in range(8):
        E("buffer_store_dwordx4 v[%d:%d], v%d, s[%d:%d], %s offen offset:%d sc1" %
          (vO + 4 * dt, vO + 4 * dt + 3, vOOFF, sWS, sWS + 3, sTMP, 64 * dt))
    E("buffer_store_dwordx2 v[%d:%d], v%d, s[%d:%d], %s offen sc1" % (vS, vS + 1, vMLOFF, sWS, sWS + 3, sTMP2))
    srd(sAUX, "s16", "s17", 256)
    E("s_lshl_b32 %s, %s, 2" % (sBH, sB))
    E("s_add_u32 %s, %s, %s" % (sBH, sBH, sH))
    E("s_lshl_b32 %s, %s, 3" % (sTMP, sWAVE))
    E("s_lshl_b32 %s, 1, %s" % (sTMP2, sTMP))
    E("v_mov_b32 v%d, %s" % (vT2, sTMP2))
    E("v_mov_b32 v%d, 0" % vT0)
    E("s_lshl_b32 %s, %s, 2" % (sTMP2, sBH))
    E("s_waitcnt vmcnt(0)")
    E("s_mov_b64 s[60:61], exec")
    E("s_mov_b64 exec, 1")
    E("buffer_atomic_add v%d, v%d, s[%d:%d], %s offen sc0 sc1" % (vT2, vT0, sAUX, sAUX + 3, sTMP2))
    E("s_waitcnt vmcnt(0)")
    E("s_mov_b64 exec, s[60:61]")
    E("v_readfirstlane_b32 %s, v%d" % (sTMP2, vT2))
    E("s_nop 3")
    E("s_lshr_b32 %s, %s, %s" % (sTMP2, sTMP2, sTMP))
    E("s_and_b32 %s, %s, 0xff" % (sTMP2, sTMP2))
    E("s_add_u32 %s, %s, 1" % (sTMP2, sTMP2))
    E("s_cmp_lg_u32 %s, %s" % (sTMP2, sK))
    E("s_cbranch_scc1 K1_EXIT")
    E("buffer_inv sc1")
    E("s_waitcnt vmcnt(0)")
    for i in range(32):
        E("v_mov_b32 v%d, 0" % (vO + i))
    E("v_mov_b32 v%d, 0xff800000" % vM)
    E("v_mov_b32 v%d, 0" % vL_)
    E("s_mov_b32 %s, 0" % sI)
    E("s_mov_b32 s72, 0x7f800000")
    E("s_mov_b32 s73, 0xff800000")
    bufs = [vK, vV, vX, vY]
    E("K1_CB:")
    for u in range(4):
        E("s_add_u32 %s, %s, %d" % (sTMP, sI, u))
        E("s_cmp_lt_u32 %s, %s" % (sTMP, sK))
        E("s_cselect_b32 s%d, s72, s73" % (64 + u))
        E("s_sub_u32 %s, %s, 1" % (sTMP2, sK))
        E("s_min_u32 %s, %s, %s" % (sTMP, sTMP, sTMP2))
        E("s_lshl_b32 %s, %s, 2" % (sTMP, sTMP))
        E("s_add_u32 %s, %s, %s" % (sTMP, sTMP, sP))
        E("s_add_u32 %s, %s, %s" % (sTMP, sTMP, sH))
        E("s_lshl_b32 s%d, %s, 15" % (68 + u, sTMP))
        E("s_lshl_b32 %s, %s, 9" % (sTMP, sTMP))
        E("s_add_u32 %s, %s, %d" % (sTMP, sTMP, ML_BASE))
        E("buffer_load_dwordx2 v[%d:%d], v%d, s[%d:%d], %s offen" %
          (vS + 2 * u, vS + 2 * u + 1, vMLOFF, sWS, sWS + 3, sTMP))
        for dt in range(8):
            E("buffer_load_dwordx4 v[%d:%d], v%d, s[%d:%d], s%d offen offset:%d" %
              (bufs[u] + 4 * dt, bufs[u] + 4 * dt + 3, vOOFF, sWS, sWS + 3, 68 + u, 64 * dt))
    for u in range(4):
        E("s_waitcnt vmcnt(%d)" % (9 * (3 - u)))
        E("v_min_f32 v%d, s%d, v%d" % (vT0, 64 + u, vS + 2 * u))
        E("v_max_f32 v%d, v%d, v%d" % (vMCN, vM, vT0))
        E("v_sub_f32 v%d, v%d, v%d" % (vAL, vM, vMCN))
        E("v_sub_f32 v%d, v%d, v%d" % (vT1, vT0, vMCN))
        E("v_exp_f32 v%d, v%d" % (vAL, vAL))
        E("v_exp_f32 v%d, v%d" % (vT1, vT1))
        E("v_mov_b32 v%d, v%d" % (vM, vMCN))
        E("v_mul_f32 v%d, v%d, v%d" % (vL_, vL_, vAL))
        E("v_fma_f32 v%d, v%d, v%d, v%d" % (vL_, vS + 2 * u + 1, vT1, vL_))
        for j in range(32):
            E("v_mul_f32 v%d, v%d, v%d" % (vO + j, vO + j, vAL))
            E("v_fma_f32 v%d, v%d, v%d, v%d" % (vO + j, bufs[u] + j, vT1, vO + j))
    E("s_add_u32 %s, %s, 4" % (sI, sI))
    E("s_cmp_lt_u32 %s, %s" % (sI, sK))
    E("s_cbranch_scc1 K1_CB")
    E("v_rcp_f32 v%d, v%d" % (vT1, vL_))
    E("s_nop 0")
    for j in range(32):
        E("v_mul_f32 v%d, v%d, v%d" % (vO + j, vO + j, vT1))
    for j in range(16):
        E("v_cvt_pk_bf16_f32 v%d, v%d, v%d" % (vK + j, vO + 2 * j, vO + 2 * j + 1))
    srd(sQS, "s14", "s15", 16 * 32 * 8 * 128 * 2)
    E("v_lshrrev_b32 v%d, 1, v%d" % (vT0, vOOFF))
    E("s_lshl_b32 %s, %s, 14" % (sTMP, sBH))
    E("s_nop 4")
    for dt in range(8):
        E("buffer_store_dwordx2 v[%d:%d], v%d, s[%d:%d], %s offen offset:%d" %
          (vK + 2 * dt, vK + 2 * dt + 1, vT0, sQS, sQS + 3, sTMP, 32 * dt))
    E("K1_EXIT:")
    E("s_waitcnt vmcnt(0)")
    E("s_endpgm")
    return NV

def kernel2():
    vACC = 8
    vOB = 16
    vML = 80
    vM, vL_, vMN, vA, vW, vT0, vT1, vOOFF, vMLOFF, vLANE = range(96, 106)
    pcl, pL, pn, pk, pPex, px, pt0, prc = ["v%d" % i for i in range(106, 114)]
    NV = 114
    sWS = 32
    sAUX = 24
    sOUT = 28
    (sB, sH, sBH, sK, sP, sI, sT, sC, sTOT, sTMP, sTMP2) = ["s%d" % i for i in range(36, 47)]
    sSO = [48 + u for u in range(8)]
    sSM = [56 + u for u in range(8)]
    sLIM = [64 + u for u in range(8)]
    E("%s_combine_kernel:" % KN)
    E("s_load_dwordx16 s[4:19], s[0:1], 0")
    E("s_cmp_ge_u32 s2, 256")
    E("s_cbranch_scc1 K2_EXIT")
    E("v_and_b32 v%d, 63, v0" % vLANE)
    E("v_and_b32 v%d, 15, v0" % vT1)
    E("v_lshlrev_b32 v%d, 2, v%d" % (vT0, vT1))
    E("s_waitcnt lgkmcnt(0)")
    srd(sAUX, "s12", "s13", 64)
    E("buffer_load_dword %s, v%d, s[%d:%d], 0 offen" % (pcl, vT0, sAUX, sAUX + 3))
    srd(sWS, "s18", "s19", WS_BYTES)
    srd(sOUT, "s14", "s15", 16 * 32 * 8 * 128 * 2)
    E("s_lshr_b32 %s, s2, 2" % sBH)
    E("s_lshr_b32 %s, %s, 2" % (sB, sBH))
    E("s_and_b32 %s, %s, 3" % (sH, sBH))
    E("s_and_b32 %s, s2, 3" % sTMP)
    E("s_lshl_b32 %s, %s, 4" % (sTMP, sTMP))
    E("v_lshrrev_b32 v%d, 4, v0" % vT0)
    E("v_add_u32 v%d, %s, v%d" % (vT0, sTMP, vT0))
    E("v_lshlrev_b32 v%d, 5, v%d" % (vT1, vT1))
    E("v_lshl_add_u32 v%d, v%d, 9, v%d" % (vOOFF, vT0, vT1))
    E("v_lshlrev_b32 v%d, 3, v%d" % (vMLOFF, vT0))
    E("s_waitcnt vmcnt(0)")
    partition(pcl, pL, pn, pk, pPex, px, pt0, prc, sT, sC, sTOT, sTMP)
    E("v_readlane_b32 %s, %s, %s" % (sK, pk, sB))
    E("v_readlane_b32 %s, %s, %s" % (sP, pPex, sB))
    for j in range(8):
        E("v_mov_b32 v%d, 0" % (vACC + j))
    E("v_mov_b32 v%d, 0xff800000" % vM)
    E("v_mov_b32 v%d, 0" % vL_)
    E("s_mov_b32 %s, 0" % sI)
    E("s_mov_b32 s72, 0x7f800000")
    E("s_mov_b32 s73, 0xff800000")
    E("K2_BATCH:")
    for u in range(8):
        E("s_add_u32 %s, %s, %d" % (sTMP, sI, u))
        E("s_cmp_lt_u32 %s, %s" % (sTMP, sK))
        E("s_cselect_b32 s%d, s72, s73" % sLIM[u])
        E("s_sub_u32 %s, %s, 1" % (sTMP2, sK))
        E("s_min_u32 %s, %s, %s" % (sTMP, sTMP, sTMP2))
        E("s_lshl_b32 %s, %s, 2" % (sTMP, sTMP))
        E("s_add_u32 %s, %s, %s" % (sTMP, sTMP, sP))
        E("s_add_u32 %s, %s, %s" % (sTMP, sTMP, sH))
        E("s_lshl_b32 s%d, %s, 15" % (sSO[u], sTMP))
        E("s_lshl_b32 s%d, %s, 9" % (sSM[u], sTMP))
        E("s_add_u32 s%d, s%d, %d" % (sSM[u], sSM[u], ML_BASE))
        E("buffer_load_dwordx2 v[%d:%d], v%d, s[%d:%d], s%d offen" %
          (vML + 2 * u, vML + 2 * u + 1, vMLOFF, sWS, sWS + 3, sSM[u]))
        E("buffer_load_dwordx4 v[%d:%d], v%d, s[%d:%d], s%d offen" %
          (vOB + 8 * u, vOB + 8 * u + 3, vOOFF, sWS, sWS + 3, sSO[u]))
        E("buffer_load_dwordx4 v[%d:%d], v%d, s[%d:%d], s%d offen offset:16" %
          (vOB + 8 * u + 4, vOB + 8 * u + 7, vOOFF, sWS, sWS + 3, sSO[u]))
    for u in range(8):
        E("s_waitcnt vmcnt(%d)" % (3 * (7 - u)))
        E("v_min_f32 v%d, s%d, v%d" % (vT0, sLIM[u], vML + 2 * u))
        E("v_max_f32 v%d, v%d, v%d" % (vMN, vM, vT0))
        E("v_sub_f32 v%d, v%d, v%d" % (vA, vM, vMN))
        E("v_sub_f32 v%d, v%d, v%d" % (vW, vT0, vMN))
        E("v_exp_f32 v%d, v%d" % (vA, vA))
        E("v_exp_f32 v%d, v%d" % (vW, vW))
        E("v_mov_b32 v%d, v%d" % (vM, vMN))
        E("v_mul_f32 v%d, v%d, v%d" % (vL_, vL_, vA))
        E("v_fma_f32 v%d, v%d, v%d, v%d" % (vL_, vML + 2 * u + 1, vW, vL_))
        for j in range(8):
            E("v_mul_f32 v%d, v%d, v%d" % (vACC + j, vACC + j, vA))
            E("v_fma_f32 v%d, v%d, v%d, v%d" % (vACC + j, vOB + 8 * u + j, vW, vACC + j))
    E("s_add_u32 %s, %s, 8" % (sI, sI))
    E("s_cmp_lt_u32 %s, %s" % (sI, sK))
    E("s_cbranch_scc1 K2_BATCH")
    E("v_rcp_f32 v%d, v%d" % (vW, vL_))
    E("s_nop 0")
    for j in range(8):
        E("v_mul_f32 v%d, v%d, v%d" % (vACC + j, vACC + j, vW))
    for j in range(4):
        E("v_cvt_pk_bf16_f32 v%d, v%d, v%d" % (vOB + j, vACC + 2 * j, vACC + 2 * j + 1))
    E("v_lshrrev_b32 v%d, 1, v%d" % (vT0, vOOFF))
    E("s_lshl_b32 %s, %s, 14" % (sTMP, sBH))
    E("s_nop 4")
    E("buffer_store_dwordx4 v[%d:%d], v%d, s[%d:%d], %s offen" % (vOB, vOB + 3, vT0, sOUT, sOUT + 3, sTMP))
    E("K2_EXIT:")
    E("s_waitcnt vmcnt(0)")
    E("s_endpgm")
    return NV

def descriptor(name, nv, nsgpr=80):
    E('.section .rodata,"a"')
    E(".p2align 6")
    E(".amdhsa_kernel %s" % name)
    E("  .amdhsa_next_free_vgpr %d" % nv)
    E("  .amdhsa_next_free_sgpr %d" % nsgpr)
    E("  .amdhsa_accum_offset %d" % ((nv + 3) // 4 * 4))
    E("  .amdhsa_group_segment_fixed_size 0")
    E("  .amdhsa_kernarg_size 64")
    E("  .amdhsa_user_sgpr_count 2")
    E("  .amdhsa_user_sgpr_kernarg_segment_ptr 1")
    E("  .amdhsa_system_sgpr_workgroup_id_x 1")
    E(".end_amdhsa_kernel")

out.append(HEADER.rstrip("\n"))
out.append("; @launch grid=(%d,1,1) block=(256,1,1) lds=%d" % (GRID1, NS * 16384))
out.append('.amdgcn_target "amdgcn-amd-amdhsa--gfx950"')
out.append(".text")
out.append(".globl %s_kernel" % KN)
out.append(".p2align 8")
out.append(".type %s_kernel,@function" % KN)
nv1 = kernel1()
descriptor("%s_kernel" % KN, nv1)
open(sys.argv[1], "w").write("\n".join(out) + "\n")
```
